```python
import torch

def _softmax(x, axis=-1):
    return torch.softmax(x, dim=axis)

def _gelu(x):
    return torch.nn.functional.gelu(x, approximate='tanh')

def _silu(x):
    return torch.nn.functional.silu(x)

def _sigmoid(x):
    return torch.sigmoid(x)

def _layernorm(x, axis=-1, eps=1e-05):
    m = x.mean(dim=axis, keepdim=True)
    v = x.var(dim=axis, keepdim=True, unbiased=False)
    return (x - m) / torch.sqrt(v + eps)

def _scatter_add(tgt, idx, src, axis=0):
    return tgt.clone().index_add_(axis, idx, src)

def _segment_sum(src, seg, n):
    out = torch.zeros((n,) + src.shape[1:], dtype=src.dtype)
    return out.index_add_(0, seg, src)

def _pad(x, pw):
    flat = tuple((v for pair in reversed(pw) for v in pair))
    return torch.nn.functional.pad(x, flat)
kernel_name = 'adaLN_cond__compressed_kv_cla__glu_gated_reglu__prompt'

def setup_inputs():

    _w = lambda a: (lambda t: t.to(torch.bfloat16) if t.is_floating_point() else t)(torch.as_tensor(a))

    def _A_setup():
        B, H, Sq, Sk, D, M = (1, 32, 2048, 2048, 128, 512)
        Dc = 4 * D
        return {'x': _w((lambda *s: torch.randn(*s, dtype=torch.bfloat16) * 0.05)(B, Sq, M)), 'c_kv': _w((lambda *s: torch.randn(*s, dtype=torch.bfloat16) * 0.8)(B, Sk, Dc)), 'w_q': _w((lambda *s: torch.randn(*s, dtype=torch.bfloat16) * 1.6)(M, H, D) * M ** (-0.5)), 'w_uk': _w((lambda *s: torch.randn(*s, dtype=torch.bfloat16) * 1.6)(Dc, H, D) * Dc ** (-0.5)), 'w_uv': _w((lambda *s: torch.randn(*s, dtype=torch.bfloat16) * 0.8)(Dc, H, D) * Dc ** (-0.5)), 'w_o': _w((lambda *s: torch.randn(*s, dtype=torch.bfloat16) * 0.8)(H, D, M) * (H * D) ** (-0.5))}
    _A_in = _A_setup()

    def _B_setup():
        B, S, D, F = (1, 2048, 512, 1792)
        return {'x': _w((lambda *s: torch.randn(*s, dtype=torch.bfloat16) * 0.05)(B, S, D)), 'W_gate': _w((lambda *s: torch.randn(*s, dtype=torch.bfloat16) * 0.4)(D, F) * (2.0 / D) ** 0.5), 'W_up': _w((lambda *s: torch.randn(*s, dtype=torch.bfloat16) * 0.4)(D, F) * (2.0 / D) ** 0.5), 'W_down': _w((lambda *s: torch.randn(*s, dtype=torch.bfloat16) * 0.4)(F, D) * (1.0 / F) ** 0.5)}
    _B_in = _B_setup()
    return {'A_x': _A_in['x'], 'A_c_kv': _A_in['c_kv'], 'A_w_q': _A_in['w_q'], 'A_w_uk': _A_in['w_uk'], 'A_w_uv': _A_in['w_uv'], 'A_w_o': _A_in['w_o'], 'B_x': _B_in['x'], 'B_W_gate': _B_in['W_gate'], 'B_W_up': _B_in['W_up'], 'B_W_down': _B_in['W_down'], 'c': _w((lambda *s: torch.randn(*s, dtype=torch.bfloat16) * 0.1)(1, 512) * 8.0), 'w_mod': _w((lambda *s: torch.randn(*s, dtype=torch.bfloat16) * 0.1)(512, 6 * 512) * 512 ** (-0.5) * 8.0)}

def reference(A_x, A_c_kv, A_w_q, A_w_uk, A_w_uv, A_w_o, B_x, B_W_gate, B_W_up, B_W_down, c, w_mod):

    def _A_ref(x, c_kv, w_q, w_uk, w_uv, w_o):
        B, Sq, M = (x.shape[0], x.shape[1], x.shape[2])
        Sk = c_kv.shape[1]
        H, D = (w_q.shape[1], w_q.shape[2])
        q = torch.einsum('bqm,mhd->bhqd', x, w_q)
        k = torch.einsum('bkc,chd->bhkd', c_kv, w_uk)
        v = torch.einsum('bkc,chd->bhkd', c_kv, w_uv)
        scores = torch.einsum('bhqd,bhkd->bhqk', q, k) * D ** (-0.5)
        off = Sk - Sq
        qi = torch.arange(Sq)[:, None]
        kj = torch.arange(Sk)[None, :]
        cmask = kj <= qi + off
        scores = torch.where(cmask[None, None], scores, -1000000000.0)
        p = _softmax(scores, axis=-1)
        ctx = torch.einsum('bhqk,bhkd->bhqd', p, v)
        return torch.einsum('bhqd,hdm->bqm', ctx, w_o)

    def _B_ref(x, W_gate, W_up, W_down):
        gate = torch.einsum('bsd,df->bsf', x, W_gate)
        up = torch.einsum('bsd,df->bsf', x, W_up)
        gate = gate * (lambda x, dt: x.to(dt))(gate > 0, gate.dtype)
        h = gate * up
        return torch.einsum('bsf,fd->bsd', h, W_down)
    x = A_x
    mod = (_silu(c) @ w_mod).reshape(c.shape[0], 6, 1, -1)
    sa, ca, ga, sb, cb, gb = (mod[:, 0].clone(), mod[:, 1].clone(), mod[:, 2].clone(), mod[:, 3].clone(), mod[:, 4].clone(), mod[:, 5].clone())
    h = _layernorm(x, axis=-1) * (1 + ca) + sa
    x = x + ga * _A_ref(h, A_c_kv, A_w_q, A_w_uk, A_w_uv, A_w_o)
    h = _layernorm(x, axis=-1) * (1 + cb) + sb
    x = x + gb * _B_ref(h, B_W_gate, B_W_up, B_W_down)
    return x
```

```python
from common import *
O=4; Q=68; SS=[100,132]; PP=164; FRG=180; AK=212; AV=220
VM=224; VL=225; VMX=226; VT=227; VMN=228; VAL=229; VNI=230; VDF=231; VKD=232; VVD=233; VLN=234; VQO=235; VL2=236; VX=237; VY=238; VZ=239
NV=240
def attn_kernel(a,name):
    kernel_header(a,name)
    a('s_cmp_ge_u32 s2, 256'); a(f's_cbranch_scc1 {name}_end')
    a('s_load_dwordx2 s[20:21], s[0:1], %d'%KA['ws']); a('s_waitcnt lgkmcnt(0)')
    srd_from(a,4,20,WS_Q,16<<20); srd_from(a,8,20,WS_K,16<<20); srd_from(a,12,20,WS_VT,16<<20); srd_from(a,16,20,WS_CTX,16<<20)
    a('v_lshrrev_b32 v1, 6, v0'); a(f'v_and_b32 v{VLN}, 63, v0'); a('s_nop 0'); a('v_readfirstlane_b32 s28, v1')
    a('s_lshl_b32 s31, s28, 10'); a('s_lshr_b32 s33, s28, 2'); a('s_and_b32 s34, s28, 3')
    a('s_and_b32 s40, s2, 7'); a('s_lshl_b32 s40, s40, 2'); a('s_lshr_b32 s35, s2, 3'); a('s_and_b32 s35, s35, 3'); a('s_add_u32 s40, s40, s35')
    a('s_lshr_b32 s48, s2, 5')
    a('s_sub_u32 s41, 15, s48')
    a('s_mov_b32 s47, 0')
    a('s_mov_b32 s46, 0x3e0293ee')
    a(f'v_mov_b32 v{VNI}, 0xff800000')
    a(f'v_lshrrev_b32 v1, 4, v{VLN}'); a('s_lshl_b32 s35, s28, 2'); a('v_add_u32 v1, s35, v1')
    a(f'v_and_b32 v2, 15, v{VLN}'); a('v_and_b32 v3, 15, v1'); a('v_xor_b32 v2, v2, v3'); a('v_lshlrev_b32 v2, 4, v2')
    a('s_lshl_b32 s35, s40, 8')
    a(f'v_lshl_add_u32 v{VKD}, v1, 13, v2'); a(f'v_add_u32 v{VKD}, s35, v{VKD}')
    a('s_lshl_b32 s35, s40, 19')
    a(f'v_lshl_add_u32 v{VVD}, v1, 12, v2'); a(f'v_add_u32 v{VVD}, s35, v{VVD}')
    a(f'v_and_b32 v1, 31, v{VLN}'); a(f'v_lshrrev_b32 v2, 5, v{VLN}'); a('v_and_b32 v3, 15, v1')
    a('v_lshlrev_b32 v1, 8, v1')
    a('s_lshl_b32 s35, s33, 14')
    for t in range(8):
        a(f'v_add_u32 v{VX}, {2*t}, v2'); a(f'v_xor_b32 v{VX}, v{VX}, v3'); a(f'v_lshl_add_u32 v{VX}, v{VX}, 4, v1')
        a(f'v_add_u32 v{AK+t}, s35, v{VX}')
    a('s_lshl_b32 s35, s33, 3')
    for u in range(4):
        a(f'v_add_u32 v{VX}, {2*u}, v2'); a(f'v_add_u32 v{VX}, s35, v{VX}'); a(f'v_xor_b32 v{VX}, v{VX}, v3'); a(f'v_lshl_add_u32 v{VX}, v{VX}, 4, v1')
        a(f'v_add_u32 v{AV+u}, 0x10000, v{VX}')
    a(f'v_and_b32 v1, 31, v{VLN}'); a('s_lshl_b32 s35, s34, 5'); a('s_lshl_b32 s36, s33, 6'); a('s_sub_u32 s35, s35, s36')
    a('v_lshlrev_b32 v3, 2, v2'); a(f'v_sub_u32 v{VDF}, v1, v3'); a(f'v_add_u32 v{VDF}, s35, v{VDF}')
    a('s_lshl_b32 s35, s34, 5'); a('v_add_u32 v1, s35, v1'); a('v_lshlrev_b32 v1, 13, v1'); a('v_lshl_add_u32 v1, v2, 4, v1')
    a('s_lshl_b32 s35, s40, 8'); a(f'v_add_u32 v{VQO}, s35, v1')

    def dma_k(slot):
        for j in range(4):
            a(f's_add_u32 s36, s44, 0x{j*262144:x}'); a(f's_add_u32 m0, s31, 0x{slot*32768+j*8192:x}'); a('s_nop 0')
            a(f'buffer_load_dwordx4 v{VKD}, s[8:11], s36 offen lds')
        a('s_add_u32 s44, s44, 0x100000')
    def dma_v(slot):
        for j in range(4):
            a(f's_add_u32 s36, s45, 0x{j*131072:x}'); a(f's_add_u32 m0, s31, 0x{65536+slot*32768+j*8192:x}'); a('s_nop 0')
            a(f'buffer_load_dwordx4 v{VVD}, s[12:15], s36 offen lds')
        a('s_add_u32 s45, s45, 256')

    a.label(f'{name}_tile')
    a('s_add_u32 s42, s41, 1'); a('s_mov_b32 s43, 0'); a('s_mov_b32 s44, 0'); a('s_mov_b32 s45, 0')
    a('s_lshl_b32 s49, s41, 20')
    dma_k(0)
    for t in range(8):
        a(f'buffer_load_dwordx4 v[{Q+4*t}:{Q+4*t+3}], v{VQO}, s[4:7], s49 offen offset:{32*t}')
    dma_v(0)
    a('s_cmp_lt_u32 s42, 2'); a(f's_cbranch_scc1 {name}_nok1')
    dma_k(1)
    a.label(f'{name}_nok1')
    for i in range(64): a(f'v_mov_b32 v{O+i}, 0')
    a(f'v_mov_b32 v{VM}, 0xf149f2ca'); a(f'v_mov_b32 v{VL}, 0'); a(f'v_mov_b32 v{VL2}, 0')
    a('s_waitcnt vmcnt(4)')
    a('s_waitcnt vmcnt(0)')
    a('s_barrier')

    def frag(i): return FRG+4*(i%8)
    def qk_items(sset,slot):
        it=[]
        for t in range(8):
            for aa in range(2):
                c=SS[sset]+16*aa
                it.append((f'v{AK+t} offset:{slot*32768+aa*8192}', lambda f,c=c,t=t: f'v_mfma_f32_32x32x16_bf16 v[{c}:{c+15}], v[{f}:{f+3}], v[{Q+4*t}:{Q+4*t+3}], '+('0' if t==0 else f'v[{c}:{c+15}]')))
        return it
    def pv_items(slot):
        it=[]
        for u in range(4):
            for dt in range(4):
                c=O+16*dt
                it.append((f'v{AV+u} offset:{slot*32768+dt*8192}', lambda f,c=c,u=u: f'v_mfma_f32_32x32x16_bf16 v[{c}:{c+15}], v[{f}:{f+3}], v[{PP+4*u}:{PP+4*u+3}], v[{c}:{c+15}]'))
        return it
    DIST=5
    def run(items,valu,deadlines):
        n=len(items); vi=0
        for i in range(min(DIST,n)):
            a(f'ds_read_b128 v[{frag(i)}:{frag(i)+3}], {items[i][0]}')
        for i in range(n):
            nd=min([d for d in deadlines if d>=i],default=None)
            if nd is None: tgt=len(valu); slots=n-i
            else: tgt=deadlines[nd]; slots=nd-i+1
            q=-(-(tgt-vi)//slots) if tgt>vi else 0
            if nd is not None and nd==i: q=tgt-vi
            for _ in range(q):
                x=valu[vi]; vi+=1
                if isinstance(x,tuple): a.label(x[1])
                else: a(x)
            if nd==i: a('s_nop 1')
            issued=min(n,i+DIST)
            a(f's_waitcnt lgkmcnt({issued-i-1})')
            a(items[i][1](frag(i)))
            if i+DIST<n:
                a(f'ds_read_b128 v[{frag(i+DIST)}:{frag(i+DIST)+3}], {items[i+DIST][0]}')
        while vi<len(valu):
            x=valu[vi]; vi+=1
            if isinstance(x,tuple): a.label(x[1])
            else: a(x)
    run(qk_items(0,0),[],{})
    a.nop(16)
    uid=[0]
    def softmax(sset,masked):
        s=SS[sset]; v=[]; marks=[]
        if masked:
            for b in range(8):
                for i in range(4):
                    e=4*b+i; aa,r=divmod(e,16); cst=32*aa+8*(r>>2)+(r&3)
                    v.append(f'v_cmp_gt_i32 s[{52+2*i}:{53+2*i}], {cst}, v{VDF}')
                for i in range(4):
                    e=4*b+i
                    v.append(f'v_cndmask_b32 v{s+e}, v{s+e}, v{VNI}, s[{52+2*i}:{53+2*i}]')
        v.append(f'v_max3_f32 v{VMX}, v{s}, v{s+1}, v{s+2}'); v.append(f'v_max3_f32 v{VT}, v{s+3}, v{s+4}, v{s+5}')
        k=6
        while k<32:
            d=VMX if (k//2)%2==1 else VT
            v.append(f'v_max3_f32 v{d}, v{d}, v{s+k}, v{s+k+1}'); k+=2
        v.append(f'v_max_f32 v{VMX}, v{VMX}, v{VT}')
        v.append(f'v_mov_b32 v{VT}, v{VMX}'); v.append('s_nop 1')
        v.append(f'v_permlane32_swap_b32 v{VT}, v{VMX}')
        v.append(f'v_max_f32 v{VMX}, v{VMX}, v{VT}')
        v.append(f'v_mul_f32 v{VMX}, s46, v{VMX}')
        v.append(f'v_max_f32 v{VMN}, v{VM}, v{VMX}')
        v.append(f'v_cmp_gt_f32 vcc, v{VMN}, v{VM}')
        v.append(f'v_sub_f32 v{VAL}, v{VM}, v{VMN}')
        v.append(f'v_mov_b32 v{VM}, v{VMN}')
        uid[0]+=1; lb=f'{name}_nr{uid[0]}'
        blk=['s_cmp_eq_u64 vcc, 0', f's_cbranch_scc1 {lb}', f'v_exp_f32 v{VAL}, v{VAL}','s_nop 0']
        blk+=[f'v_mul_f32 v{O+i}, v{O+i}, v{VAL}' for i in range(64)]
        blk+=[f'v_mul_f32 v{VL}, v{VL}, v{VAL}', f'v_mul_f32 v{VL2}, v{VL2}, v{VAL}']
        v.append('\n    '.join(blk)+f'\n{lb}:')
        for u in range(4):
            b=s+8*u
            for i in range(8): v.append(f'v_fma_f32 v{b+i}, v{b+i}, s46, -v{VMN}')
            for i in range(8): v.append(f'v_exp_f32 v{b+i}, v{b+i}')
            for i in range(4): v.append(f'v_cvt_pk_bf16_f32 v{PP+4*u+i}, v{b+2*i}, v{b+2*i+1}')
            marks.append(len(v))
            for i in range(8): v.append(f'v_add_f32 v{VL if i%2==0 else VL2}, v{VL if i%2==0 else VL2}, v{b+i}')
        return v,marks
    def body(par,last):
        a('s_waitcnt vmcnt(0)'); a('s_barrier')
        if not last:
            a('s_add_u32 s36, s43, 2'); a('s_cmp_ge_u32 s36, s42'); uid[0]+=1; lb=f'{name}_nk{uid[0]}'
            a(f's_cbranch_scc1 {lb}'); dma_k(par); a.label(lb)
            dma_v(par^1)
        v,marks=softmax(par,last)
        if last:
            items=pv_items(par); dl={4*u:marks[u] for u in range(4)}
        else:
            items=qk_items(par^1,par^1)+pv_items(par); dl={16+4*u:marks[u] for u in range(4)}
        run(items,v,dl)
    a.label(f'{name}_loop0')
    a('s_add_u32 s36, s43, 1'); a('s_cmp_ge_u32 s36, s42'); a(f's_cbranch_scc1 {name}_last0')
    body(0,False)
    a('s_add_u32 s43, s43, 1')
    a('s_add_u32 s36, s43, 1'); a('s_cmp_ge_u32 s36, s42'); a(f's_cbranch_scc1 {name}_last1')
    body(1,False)
    a('s_add_u32 s43, s43, 1')
    a(f's_branch {name}_loop0')
    a.label(f'{name}_last0'); body(0,True); a(f's_branch {name}_fin')
    a.label(f'{name}_last1'); body(1,True)
    a.label(f'{name}_fin')
    a(f'v_add_f32 v{VL}, v{VL}, v{VL2}'); a(f'v_mov_b32 v{VT}, v{VL}'); a('s_nop 1')
    a(f'v_permlane32_swap_b32 v{VT}, v{VL}'); a(f'v_add_f32 v{VL}, v{VL}, v{VT}')
    a.nop(12)
    a('s_barrier')
    a('s_mul_i32 s35, s28, 8704'); a(f'v_lshl_add_u32 v{VX}, v{VLN}, 4, s35'); a(f'v_lshl_add_u32 v{VY}, v{VLN}, 3, s35')
    a('s_xor_b32 s35, s28, 4'); a('s_mul_i32 s35, s35, 8704'); a(f'v_lshl_add_u32 v{VZ}, v{VLN}, 4, s35'); a(f'v_lshl_add_u32 v{VT}, v{VLN}, 3, s35')
    a(f'ds_write_b64 v{VY}, v[{VM}:{VL}] offset:8192')
    R=SS[0]
    def fin(kh):
        send=O+32*(1-kh); keep=O+32*kh
        for i in range(8): a(f'ds_write_b128 v{VX}, v[{send+4*i}:{send+4*i+3}] offset:{i*1024}')
        a('s_waitcnt lgkmcnt(0)'); a('s_barrier')
        a(f'ds_read_b64 v[{VMX}:{VMX+1}], v{VT} offset:8192')
        for i in range(8): a(f'ds_read_b128 v[{R+4*i}:{R+4*i+3}], v{VZ} offset:{i*1024}')
        a('s_waitcnt lgkmcnt(8)')
        a(f'v_max_f32 v{VMN}, v{VM}, v{VMX}')
        a(f'v_sub_f32 v{VM}, v{VM}, v{VMN}'); a(f'v_sub_f32 v{VMX}, v{VMX}, v{VMN}')
        a(f'v_exp_f32 v{VM}, v{VM}'); a(f'v_exp_f32 v{VMX}, v{VMX}'); a('s_nop 0')
        a(f'v_mul_f32 v{VL}, v{VL}, v{VM}'); a(f'v_fmac_f32 v{VL}, v{VT}, v{VMX}')
        a(f'v_rcp_f32 v{VL}, v{VL}'); a('s_nop 0')
        a(f'v_mul_f32 v{VM}, v{VM}, v{VL}'); a(f'v_mul_f32 v{VMX}, v{VMX}, v{VL}')
        a('s_waitcnt lgkmcnt(0)')
        for i in range(32):
            a(f'v_mul_f32 v{keep+i}, v{keep+i}, v{VM}'); a(f'v_fmac_f32 v{keep+i}, v{R+i}, v{VMX}')
        for q in range(4):
            t=SS[1]+4*q
            for i in range(4): a(f'v_cvt_pk_bf16_f32 v{t+i}, v{keep+8*q+2*i}, v{keep+8*q+2*i+1}')
            a(f'buffer_store_dwordx4 v[{t}:{t+3}], v{VQO}, s[16:19], s49 offen offset:{128*kh+32*q}')
    a('s_cmp_eq_u32 s33, 0'); a(f's_cbranch_scc0 {name}_fin1')
    fin(0); a(f's_branch {name}_fin2')
    a.label(f'{name}_fin1'); fin(1)
    a.label(f'{name}_fin2')
    a('s_cmp_eq_u32 s47, 1'); a(f's_cbranch_scc1 {name}_end')
    a('s_mov_b32 s47, 1'); a('s_mov_b32 s41, s48')
    a('s_barrier')
    a(f's_branch {name}_tile')
    a.label(f'{name}_end')
    a('s_endpgm')
    return NV
```

```python
WS_MOD=0; WS_H1=1<<20; WS_Q=4<<20; WS_K=20<<20; WS_VT=36<<20; WS_CTX=52<<20; WS_X1=68<<20; WS_H2=70<<20; WS_HH=72<<20; WS_PART=80<<20
KA={'x':0,'ckv':8,'wq':16,'wuk':24,'wuv':32,'wo':40,'bx':48,'wg':56,'wu':64,'wd':72,'c':80,'wmod':88,'out':96,'dbg':104,'ws':112}

class Asm:
    def __init__(self):
        self.lines=[]
    def __call__(self,s):
        self.lines.append('    '+s)
    def label(self,l):
        self.lines.append(l+':')
    def raw(self,s):
        self.lines.append(s)
    def nop(self,n):
        while n>0:
            k=min(n,16); self('s_nop %d'%(k-1)); n-=k
    def text(self):
        return '\n'.join(self.lines)+'\n'

def kernel_header(a,name):
    a.raw('.text'); a.raw('.globl %s'%name); a.raw('.p2align 8'); a.raw('.type %s,@function'%name); a.label(name)

def kernel_desc(name,nvgpr,nsgpr=100):
    acc=(nvgpr+3)//4*4
    return f'''.section .rodata,"a"
.p2align 6
.amdhsa_kernel {name}
  .amdhsa_next_free_vgpr {nvgpr}
  .amdhsa_next_free_sgpr {nsgpr}
  .amdhsa_accum_offset {acc}
  .amdhsa_group_segment_fixed_size 0
  .amdhsa_kernarg_size 120
  .amdhsa_user_sgpr_count 2
  .amdhsa_user_sgpr_kernarg_segment_ptr 1
  .amdhsa_system_sgpr_workgroup_id_x 1
.end_amdhsa_kernel
'''

def srd_from(a,d,ptr,off,size):
    if off:
        a(f's_add_u32 s{d}, s{ptr}, 0x{off:x}'); a(f's_addc_u32 s{d+1}, s{ptr+1}, 0')
    else:
        a(f's_mov_b32 s{d}, s{ptr}'); a(f's_mov_b32 s{d+1}, s{ptr+1}')
    a(f's_mov_b32 s{d+2}, 0x{size:x}'); a(f's_mov_b32 s{d+3}, 0x00020000')
```

```python
from common import *

def gemm_body(a, P, pfx):
    BM,BN,WM,WN,KS,BK,NS,K=[P[k] for k in ('BM','BN','WM','WN','KS','BK','NS','K')]
    lda,ldb,ldc,NB,kperm,orient,epi=[P[k] for k in ('lda','ldb','ldc','NB','kperm','orient','epi')]
    assert WM*WN*KS==8
    TM,TN=BM//WM,BN//WN; nmt,nnt=TM//32,TN//32
    rowA=BK*2; rowB=BN*2//NB
    szA=BM*rowA; szB=BK*rowB; stage=szA+NB*szB
    nst=K//BK; S=BK//16//KS
    nA=szA//1024//8; nBs=szB//1024//8
    assert szA%8192==0 and szB%8192==0, (szA,szB)
    ndma=nA+NB*nBs
    assert NS*stage<=163840
    ACC=2+0; ACC=4
    nacc=16*nmt*nnt
    FR=ACC+nacc; fsz=4*(nmt+nnt)
    cur=FR+2*fsz
    def alloc(n=1):
        nonlocal cur
        r=cur; cur+=n; return r
    vAd=[alloc() for _ in range(nA)]; vBd=[alloc() for _ in range(nBs)]
    vl=alloc(); vt0=alloc(); vt1=alloc(); vt2=alloc(); vt3=alloc()
    a('v_lshrrev_b32 v1, 6, v0'); a(f'v_and_b32 v{vl}, 63, v0'); a('s_nop 0'); a('v_readfirstlane_b32 s28, v1')
    a(f's_lshl_b32 s31, s28, 10')
    nw=WM*WN
    a(f's_lshr_b32 s33, s28, {nw.bit_length()-1}')
    a(f's_and_b32 s34, s28, {nw-1}')
    a(f's_and_b32 s35, s34, {WM-1}')
    a(f's_lshr_b32 s36, s34, {WM.bit_length()-1}')
    lpr=rowA//16; RA=1024//rowA
    a(f'v_lshrrev_b32 v{vt0}, {lpr.bit_length()-1}, v{vl}')
    a(f's_mul_i32 s37, s28, {RA}')
    a(f'v_add_u32 v{vt0}, s37, v{vt0}')
    a(f'v_and_b32 v{vt1}, {lpr-1}, v{vl}')
    if rowA==128:
        a(f'v_lshrrev_b32 v{vt2}, 1, v{vt0}'); a(f'v_and_b32 v{vt2}, 7, v{vt2}')
    else:
        a(f'v_and_b32 v{vt2}, 15, v{vt0}')
    a(f'v_xor_b32 v{vt1}, v{vt1}, v{vt2}'); a(f'v_lshlrev_b32 v{vt1}, 4, v{vt1}')
    a(f'v_add_u32 v{vt0}, s40, v{vt0}')
    a(f's_mov_b32 s37, {lda}')
    a(f'v_mul_lo_u32 v{vt0}, v{vt0}, s37')
    a(f'v_add_u32 v{vAd[0]}, v{vt0}, v{vt1}')
    for j in range(1,nA):
        a(f'v_add_u32 v{vAd[j]}, 0x{j*8*RA*lda:x}, v{vAd[0]}')
    lpr=rowB//16; RB=1024//rowB
    a(f'v_lshrrev_b32 v{vt0}, {lpr.bit_length()-1}, v{vl}')
    a(f's_mul_i32 s37, s28, {RB}')
    a(f'v_add_u32 v{vt0}, s37, v{vt0}')
    a(f'v_and_b32 v{vt1}, {lpr-1}, v{vl}')
    if rowB==128:
        a(f'v_lshrrev_b32 v{vt2}, 1, v{vt0}'); a(f'v_and_b32 v{vt2}, 1, v{vt2}')
    else:
        a(f'v_and_b32 v{vt2}, 3, v{vt0}')
    a(f'v_lshlrev_b32 v{vt2}, 2, v{vt2}')
    a(f'v_xor_b32 v{vt1}, v{vt1}, v{vt2}'); a(f'v_lshlrev_b32 v{vt1}, 4, v{vt1}')
    a(f's_mov_b32 s37, {ldb}')
    a(f'v_mul_lo_u32 v{vt0}, v{vt0}, s37')
    a(f's_lshl_b32 s37, s41, 1')
    a(f'v_add3_u32 v{vBd[0]}, v{vt0}, v{vt1}, s37')
    for j in range(1,nBs):
        a(f'v_add_u32 v{vBd[j]}, 0x{j*8*RB*ldb:x}, v{vBd[0]}')
    def issue_stage(st):
        slot=st%NS; base=slot*stage
        a(f's_mov_b32 s29, 0x{st*BK*2:x}'); a(f's_mov_b32 s30, 0x{st*BK*ldb:x}')
        for j in range(nA):
            a(f's_add_u32 m0, s31, 0x{base+j*8192:x}'); a('s_nop 0')
            a(f'buffer_load_dwordx4 v{vAd[j]}, s[4:7], s29 offen lds')
        for sb in range(NB):
            for j in range(nBs):
                a(f's_add_u32 m0, s31, 0x{base+szA+sb*szB+j*8192:x}'); a('s_nop 0')
                a(f'buffer_load_dwordx4 v{vBd[j]}, s[{8+4*sb}:{11+4*sb}], s30 offen lds')
    for st in range(min(NS,nst)):
        issue_stage(st)
    nwin=(NS*stage+65535)//65536
    vAr=[[alloc() for _ in range(S)] for _ in range(nwin)]
    vBr=[[alloc() for _ in range(nnt)] for _ in range(nwin)]
    a(f'v_and_b32 v{vt0}, 31, v{vl}'); a(f'v_lshrrev_b32 v{vt1}, 5, v{vl}')
    if rowA==128:
        a(f'v_lshrrev_b32 v{vt2}, 1, v{vt0}'); a(f'v_and_b32 v{vt2}, 7, v{vt2}')
    else:
        a(f'v_and_b32 v{vt2}, 15, v{vt0}')
    a(f's_mul_i32 s37, s35, {TM}')
    a(f'v_add_u32 v{vt0}, s37, v{vt0}')
    a(f'v_lshlrev_b32 v{vt0}, {rowA.bit_length()-1}, v{vt0}')
    a(f's_mul_i32 s37, s33, {2*S}')
    a(f'v_add_u32 v{vt1}, s37, v{vt1}')
    for tt in range(S):
        a(f'v_add_u32 v{vt3}, {2*tt}, v{vt1}')
        a(f'v_xor_b32 v{vt3}, v{vt3}, v{vt2}')
        a(f'v_lshl_add_u32 v{vAr[0][tt]}, v{vt3}, 4, v{vt0}')
        for w in range(1,nwin):
            a(f'v_add_u32 v{vAr[w][tt]}, 0x{w*65536:x}, v{vAr[0][tt]}')
    a(f'v_bfe_u32 v{vt0}, v{vl}, 2, 2')
    a(f'v_lshrrev_b32 v{vt1}, 5, v{vl}')
    a(f'v_lshlrev_b32 v{vt1}, {2 if kperm else 3}, v{vt1}')
    a(f'v_add_u32 v{vt1}, v{vt1}, v{vt0}')
    a(f's_mul_i32 s37, s33, {16*S}')
    a(f'v_add_u32 v{vt1}, s37, v{vt1}')
    a(f'v_lshlrev_b32 v{vt1}, {rowB.bit_length()-1}, v{vt1}')
    a(f'v_and_b32 v{vt2}, 3, v{vl}'); a(f'v_lshlrev_b32 v{vt2}, 3, v{vt2}')
    a(f'v_add_u32 v{vt1}, v{vt1}, v{vt2}')
    a(f'v_bfe_u32 v{vt2}, v{vl}, 4, 1'); a(f'v_lshlrev_b32 v{vt2}, 5, v{vt2}')
    a(f'v_add_u32 v{vt1}, v{vt1}, v{vt2}')
    if rowB==128:
        a(f'v_lshrrev_b32 v{vt0}, 1, v{vt0}')
    a(f's_mul_i32 s37, s36, {nnt//NB}')
    for nt in range(nnt):
        sb=nt%NB
        a(f's_add_u32 s38, s37, {nt//NB}')
        a(f'v_xor_b32 v{vt2}, s38, v{vt0}')
        a(f'v_lshl_add_u32 v{vt2}, v{vt2}, 6, v{vt1}')
        for w in range(nwin):
            a(f'v_add_u32 v{vBr[w][nt]}, 0x{w*65536+szA+sb*szB:x}, v{vt2}')
    nrd=nmt+2*nnt
    def reads(s):
        st,tt=divmod(s,S); base=(st%NS)*stage; f=FR+(s&1)*fsz
        for mt in range(nmt):
            off=base+mt*32*rowA; w=off//65536
            a(f'ds_read_b128 v[{f+4*mt}:{f+4*mt+3}], v{vAr[w][tt]} offset:{off-w*65536}')
        for nt in range(nnt):
            for e in range(2):
                off=base+(16*tt+e*(8 if kperm else 4))*rowB
                w=off//65536
                r=f+4*nmt+4*nt+2*e
                a(f'ds_read_b64_tr_b16 v[{r}:{r+1}], v{vBr[w][nt]} offset:{off-w*65536}')
    def mfmas(s):
        f=FR+(s&1)*fsz
        for mt in range(nmt):
            for nt in range(nnt):
                c=ACC+16*(mt*nnt+nt); fa=f+4*mt; fb=f+4*nmt+4*nt
                x,y=(fb,fa) if orient=='N' else (fa,fb)
                src='0' if s==0 else f'v[{c}:{c+15}]'
                a(f'v_mfma_f32_32x32x16_bf16 v[{c}:{c+15}], v[{x}:{x+3}], v[{y}:{y+3}], {src}')
    nsteps=nst*S
    def boundary(st):
        issued=min(nst, NS+max(st-1,0)) if st>0 else min(NS,nst)
        outst=(issued-1-st)*ndma
        a(f's_waitcnt vmcnt({outst}) lgkmcnt(0)')
        a('s_barrier')
        if st>0 and st-1+NS<nst:
            issue_stage(st-1+NS)
    boundary(0); reads(0)
    for s in range(nsteps):
        if s+1<nsteps:
            if (s+1)%S==0:
                boundary((s+1)//S); reads(s+1)
                mfmas(s)
            else:
                reads(s+1); a(f's_waitcnt lgkmcnt({nrd})'); mfmas(s)
        else:
            a('s_waitcnt lgkmcnt(0)'); mfmas(s)
    a.nop(20)
    if KS==2:
        a('s_barrier')
        a(f's_and_b32 s37, s28, {nw-1}'); a(f's_mul_i32 s37, s37, {nacc*256}')
        a(f'v_lshl_add_u32 v{vt0}, v{vl}, 4, s37')
        a('s_cmp_eq_u32 s33, 0'); a(f's_cbranch_scc1 {pfx}_red0')
        for i in range(nacc//4):
            a(f'ds_write_b128 v{vt0}, v[{ACC+4*i}:{ACC+4*i+3}] offset:{i*1024}')
        a('s_waitcnt lgkmcnt(0)'); a('s_barrier'); a('s_endpgm')
        a.label(f'{pfx}_red0')
        a('s_barrier')
        assert nacc<=2*fsz
        for i in range(nacc//4):
            a(f'ds_read_b128 v[{FR+4*i}:{FR+4*i+3}], v{vt0} offset:{i*1024}')
        a('s_waitcnt lgkmcnt(0)')
        for i in range(nacc):
            a(f'v_add_f32 v{ACC+i}, v{ACC+i}, v{FR+i}')
    a(f'v_and_b32 v{vt0}, 31, v{vl}'); a(f'v_lshrrev_b32 v{vt1}, 5, v{vl}')
    a(f's_mul_i32 s37, s35, {TM}'); a(f's_add_u32 s37, s37, s40')
    a(f's_mul_i32 s38, s36, {TN//NB}'); a(f's_add_u32 s38, s38, s42')
    a(f's_mov_b32 s39, {ldc}')
    T=FR
    if epi in('perm','glu'):
        rs,cs=('s37','s38') if orient=='N' else ('s38','s37')
        a(f'v_add_u32 v{vt0}, {rs}, v{vt0}'); a(f'v_mul_lo_u32 v{vt0}, v{vt0}, s39')
        a(f'v_lshlrev_b32 v{vt1}, 4, v{vt1}'); a(f's_lshl_b32 s39, {cs}, 1')
        a(f'v_add3_u32 v{vt0}, v{vt0}, v{vt1}, s39')
        k=0
        for mt in range(nmt):
            for nt in range(0,nnt,NB):
                c=ACC+16*(mt*nnt+nt)
                if epi=='glu':
                    for i in range(16):
                        a(f'v_max_f32 v{c+i}, 0, v{c+i}')
                    for i in range(16):
                        a(f'v_mul_f32 v{c+i}, v{c+i}, v{c+16+i}')
                no=nt//NB
                for g in range(2):
                    t=T+4*(k%(fsz//2)); k+=1
                    for i in range(4):
                        a(f'v_cvt_pk_bf16_f32 v{t+i}, v{c+8*g+2*i}, v{c+8*g+2*i+1}')
                    if orient=='N': ro,co=mt*32*ldc, (32*no+16*g)*2
                    else: ro,co=no*32*ldc,(32*mt+16*g)*2
                    a(f's_mov_b32 s39, 0x{ro:x}')
                    a(f'buffer_store_dwordx4 v[{t}:{t+3}], v{vt0}, s[16:19], s39 offen offset:{co}')
    elif epi=='resid':
        assert orient=='N'
        a(f'v_add_u32 v{vt0}, s37, v{vt0}'); a(f'v_mul_lo_u32 v{vt0}, v{vt0}, s39')
        a(f'v_lshlrev_b32 v{vt2}, 3, v{vt1}'); a(f's_lshl_b32 s39, s38, 1')
        a(f'v_add3_u32 v{vt0}, v{vt0}, v{vt2}, s39')
        a(f'v_lshlrev_b32 v{vt2}, 4, v{vt1}'); a(f's_lshl_b32 s39, s38, 2')
        a(f'v_add_u32 v{vt2}, s39, v{vt2}')
        RG=cur; cur+=16; RG=(RG+3)//4*4; cur=RG+16; RR=cur; cur+=8
        for mt in range(nmt):
            for nt in range(nnt):
                c=ACC+16*(mt*nnt+nt)
                a(f's_mov_b32 s39, 0x{mt*32*ldc:x}')
                for j in range(4):
                    a(f'buffer_load_dwordx4 v[{RG+4*j}:{RG+4*j+3}], v{vt2}, s[24:27], 0 offen offset:{(32*nt+8*j)*4}')
                for j in range(4):
                    a(f'buffer_load_dwordx2 v[{RR+2*j}:{RR+2*j+1}], v{vt0}, s[20:23], s39 offen offset:{(32*nt+8*j)*2}')
                a('s_waitcnt vmcnt(0)')
                for j in range(4):
                    for i in range(2):
                        a(f'v_lshlrev_b32 v{vt1}, 16, v{RR+2*j+i}')
                        a(f'v_and_b32 v{vt3}, 0xffff0000, v{RR+2*j+i}')
                        a(f'v_fma_f32 v{c+4*j+2*i}, v{c+4*j+2*i}, v{RG+4*j+2*i}, v{vt1}')
                        a(f'v_fma_f32 v{c+4*j+2*i+1}, v{c+4*j+2*i+1}, v{RG+4*j+2*i+1}, v{vt3}')
                        a(f'v_cvt_pk_bf16_f32 v{RR+2*j+i}, v{c+4*j+2*i}, v{c+4*j+2*i+1}')
                    a(f'buffer_store_dwordx2 v[{RR+2*j}:{RR+2*j+1}], v{vt0}, s[16:19], s39 offen offset:{(32*nt+8*j)*2}')
    a('s_endpgm')
    return cur, NS*stage
```

```python
from common import *

def dpp_sum8(a,v,t):
    for m in ('quad_perm:[1,0,3,2]','quad_perm:[2,3,0,1]','row_half_mirror'):
        a('s_nop 1')
        a(f'v_add_f32_dpp v{v}, v{v}, v{v} {m} row_mask:0xf bank_mask:0xf')

def row_stats(a,X,n,vm,vr,t0,t1):
    a(f'v_mov_b32 v{vm}, 0')
    for i in range(n):
        a(f'v_lshlrev_b32 v{t0}, 16, v{X+i}'); a(f'v_and_b32 v{t1}, 0xffff0000, v{X+i}')
        a(f'v_add_f32 v{vm}, v{vm}, v{t0}'); a(f'v_add_f32 v{vm}, v{vm}, v{t1}')
    dpp_sum8(a,vm,t0)
    a(f'v_mul_f32 v{vm}, 0x3b000000, v{vm}')
    a(f'v_mov_b32 v{vr}, 0')
    for i in range(n):
        a(f'v_lshlrev_b32 v{t0}, 16, v{X+i}'); a(f'v_and_b32 v{t1}, 0xffff0000, v{X+i}')
        a(f'v_sub_f32 v{t0}, v{t0}, v{vm}'); a(f'v_sub_f32 v{t1}, v{t1}, v{vm}')
        a(f'v_fmac_f32 v{vr}, v{t0}, v{t0}'); a(f'v_fmac_f32 v{vr}, v{t1}, v{t1}')
    dpp_sum8(a,vr,t0)
    a(f'v_mov_b32 v{t0}, 0x3727c5ac')
    a(f'v_fmac_f32 v{t0}, 0x3b000000, v{vr}')
    a(f'v_rsq_f32 v{vr}, v{t0}')
    a('s_nop 0')

def prep_body(a,pfx):
    a('s_load_dwordx2 s[4:5], s[0:1], %d'%KA['x']); a('s_load_dwordx2 s[6:7], s[0:1], %d'%KA['c'])
    a('s_load_dwordx2 s[8:9], s[0:1], %d'%KA['wmod']); a('s_load_dwordx2 s[10:11], s[0:1], %d'%KA['ws'])
    a('s_waitcnt lgkmcnt(0)')
    srd_from(a,12,4,0,2048*1024); srd_from(a,16,6,0,1024); srd_from(a,20,8,0,512*6144)
    srd_from(a,24,10,WS_MOD,3072*4); srd_from(a,28,10,WS_H1,2048*1024)
    a('s_and_b32 s34, s43, 15'); a('s_lshl_b32 s32, s34, 5'); a('s_add_u32 s33, s32, 480')
    a('s_cmp_lt_u32 s43, 256'); a(f's_cbranch_scc1 {pfx}_c0')
    a('s_sub_u32 s32, s43, 256'); a('s_lshl_b32 s32, s32, 6'); a('s_add_u32 s32, s32, 1024'); a('s_mov_b32 s33, s32')
    a.label(f'{pfx}_c0')
    a('v_and_b32 v1, 7, v0'); a('v_lshrrev_b32 v2, 3, v0')
    a('v_mov_b32 v3, s32'); a('v_mov_b32 v4, s33'); a('v_cmp_gt_u32 vcc, 4, v1'); a('s_nop 1')
    a('v_cndmask_b32 v3, v4, v3, vcc')
    a('v_lshl_add_u32 v3, v1, 3, v3')
    a('v_lshlrev_b32 v3, 1, v3')
    a('s_mov_b32 s35, %d'%(8*6144)); a('v_mul_lo_u32 v4, v2, s35'); a('v_add_u32 v3, v3, v4')
    a('v_lshlrev_b32 v4, 4, v2')
    a('buffer_load_dwordx4 v[8:11], v4, s[16:19], 0 offen')
    for i in range(8):
        a(f's_mov_b32 s35, {i*6144}')
        a(f'buffer_load_dwordx4 v[{16+4*i}:{19+4*i}], v3, s[20:23], s35 offen')
    a('v_lshrrev_b32 v5, 3, v0')
    a('s_lshr_b32 s36, s43, 4'); a('s_and_b32 s36, s36, 15'); a('s_lshl_b32 s36, s36, 17')
    a('v_lshlrev_b32 v5, 10, v5'); a('v_lshl_add_u32 v5, v1, 4, v5')
    for g in range(2):
        for i in range(8):
            a(f's_add_u32 s35, s36, {g*65536}')
            a(f'buffer_load_dwordx4 v[{64+32*g+4*i}:{67+32*g+4*i}], v5, s[12:15], s35 offen offset:{i*128}')
    a('s_waitcnt vmcnt(24)')
    for i in range(8):
        r=8+i//2
        a(f'v_lshlrev_b32 v{48+i}, 16, v{r}' if i%2==0 else f'v_and_b32 v{48+i}, 0xffff0000, v{r}')
    for i in range(8):
        a(f'v_mul_f32 v{56+i}, 0xbfb8aa3b, v{48+i}')
    for i in range(8): a(f'v_exp_f32 v{56+i}, v{56+i}')
    for i in range(8): a(f'v_add_f32 v{56+i}, 1.0, v{56+i}')
    for i in range(8): a(f'v_rcp_f32 v{56+i}, v{56+i}')
    for i in range(8): a(f'v_mul_f32 v{48+i}, v{48+i}, v{56+i}')
    a('s_waitcnt vmcnt(16)')
    for j in range(8): a(f'v_mov_b32 v{56+j}, 0')
    for i in range(8):
        for j in range(8):
            r=16+4*i+j//2
            a(f'v_lshlrev_b32 v6, 16, v{r}' if j%2==0 else f'v_and_b32 v6, 0xffff0000, v{r}')
            a(f'v_fmac_f32 v{56+j}, v6, v{48+i}')
    a('v_lshlrev_b32 v6, 8, v2'); a('v_lshl_add_u32 v6, v1, 5, v6')
    a('ds_write_b128 v6, v[56:59]'); a('ds_write_b128 v6, v[60:63] offset:16')
    a('s_waitcnt lgkmcnt(0)'); a('s_barrier')
    a('v_and_b32 v6, 63, v0'); a('v_lshrrev_b32 v7, 6, v0')
    a('v_lshlrev_b32 v8, 2, v6'); a('v_lshl_add_u32 v8, v7, 11, v8')
    for i in range(8): a(f'ds_read_b32 v{16+i}, v8 offset:{i*256}')
    a('s_waitcnt lgkmcnt(0)')
    for i in range(1,8): a(f'v_add_f32 v16, v16, v{16+i}')
    a('v_lshlrev_b32 v8, 2, v0')
    a('ds_write_b32 v8, v16 offset:16384')
    a('s_waitcnt lgkmcnt(0)'); a('s_barrier')
    a('v_lshlrev_b32 v8, 2, v6')
    for i in range(8): a(f'ds_read_b32 v{16+i}, v8 offset:{16384+i*256}')
    a('s_waitcnt lgkmcnt(0)')
    for i in range(1,8): a(f'v_add_f32 v16, v16, v{16+i}')
    a('s_cmp_lt_u32 s43, 256'); a(f's_cbranch_scc1 {pfx}_ln')
    a('s_lshl_b32 s35, s32, 2')
    a('v_cmp_gt_u32 vcc, 64, v0'); a('s_and_saveexec_b64 s[38:39], vcc')
    a(f's_cbranch_execz {pfx}_end')
    a('buffer_store_dword v16, v8, s[24:27], s35 offen')
    a.label(f'{pfx}_end')
    a('s_endpgm')
    a.label(f'{pfx}_ln')
    a('ds_write_b32 v8, v16 offset:20480')
    a('s_waitcnt vmcnt(0)')
    for g in range(2):
        row_stats(a,64+32*g,32,10+2*g,11+2*g,6,7)
    a('v_lshrrev_b32 v5, 3, v0'); a('v_lshlrev_b32 v5, 3, v5')
    a('ds_write_b64 v5, v[10:11] offset:21504'); a('ds_write_b64 v5, v[12:13] offset:22016')
    a('v_lshrrev_b32 v5, 2, v0'); a('v_and_b32 v6, 3, v0')
    a('v_lshlrev_b32 v7, 10, v5'); a('v_lshl_add_u32 v7, v6, 4, v7')
    a('s_lshl_b32 s35, s32, 1'); a('s_add_u32 s35, s35, s36')
    a('buffer_load_dwordx4 v[16:19], v7, s[12:15], s35 offen')
    a('s_waitcnt lgkmcnt(0)'); a('s_barrier')
    a('v_lshlrev_b32 v5, 3, v5'); a('ds_read_b64 v[10:11], v5 offset:21504')
    a('v_lshlrev_b32 v6, 5, v6')
    a('ds_read_b128 v[20:23], v6 offset:20480'); a('ds_read_b128 v[24:27], v6 offset:20496')
    a('ds_read_b128 v[28:31], v6 offset:20608'); a('ds_read_b128 v[32:35], v6 offset:20624')
    a('s_waitcnt vmcnt(0) lgkmcnt(0)')
    for j in range(8):
        r=16+j//2
        a(f'v_lshlrev_b32 v{36+j}, 16, v{r}' if j%2==0 else f'v_and_b32 v{36+j}, 0xffff0000, v{r}')
        a(f'v_sub_f32 v{36+j}, v{36+j}, v10'); a(f'v_mul_f32 v{36+j}, v{36+j}, v11')
        a(f'v_add_f32 v{28+j}, 1.0, v{28+j}')
        a(f'v_fma_f32 v{36+j}, v{36+j}, v{28+j}, v{20+j}')
    for j in range(4): a(f'v_cvt_pk_bf16_f32 v{16+j}, v{36+2*j}, v{37+2*j}')
    a('buffer_store_dwordx4 v[16:19], v7, s[28:31], s35 offen')
    a('s_endpgm')
    return 128

def ln2_kernel(a,name):
    kernel_header(a,name)
    a('s_cmp_ge_u32 s2, 256'); a(f's_cbranch_scc1 {name}_end')
    a('s_load_dwordx2 s[10:11], s[0:1], %d'%KA['ws']); a('s_waitcnt lgkmcnt(0)')
    srd_from(a,12,10,WS_X1,2048*1024); srd_from(a,24,10,WS_MOD+3*2048,4096); srd_from(a,28,10,WS_H2,2048*1024)
    a('v_and_b32 v1, 7, v0'); a('v_lshrrev_b32 v5, 3, v0')
    a('v_lshlrev_b32 v5, 10, v5'); a('v_lshl_add_u32 v5, v1, 4, v5'); a('s_lshl_b32 s35, s2, 13')
    for i in range(8):
        a(f'buffer_load_dwordx4 v[{16+4*i}:{19+4*i}], v5, s[12:15], s35 offen offset:{i*128}')
    a('v_lshlrev_b32 v2, 5, v1')
    for i in range(8):
        for q in range(2):
            a(f'buffer_load_dwordx4 v[{64+8*i+4*q}:{67+8*i+4*q}], v2, s[24:27], 0 offen offset:{i*256+16*q}')
            a(f'buffer_load_dwordx4 v[{128+8*i+4*q}:{131+8*i+4*q}], v2, s[24:27], 0 offen offset:{2048+i*256+16*q}')
    a('s_waitcnt vmcnt(32)')
    row_stats(a,16,32,10,11,6,7)
    a('s_waitcnt vmcnt(0)')
    for i in range(8):
        for j in range(8):
            r=16+4*i+j//2; t=48+j
            a(f'v_lshlrev_b32 v{t}, 16, v{r}' if j%2==0 else f'v_and_b32 v{t}, 0xffff0000, v{r}')
            a(f'v_sub_f32 v{t}, v{t}, v10'); a(f'v_mul_f32 v{t}, v{t}, v11')
            a(f'v_add_f32 v{128+8*i+j}, 1.0, v{128+8*i+j}')
            a(f'v_fma_f32 v{t}, v{t}, v{128+8*i+j}, v{64+8*i+j}')
        for j in range(4): a(f'v_cvt_pk_bf16_f32 v{16+4*i+j}, v{48+2*j}, v{49+2*j}')
        a(f'buffer_store_dwordx4 v[{16+4*i}:{19+4*i}], v5, s[28:31], s35 offen offset:{i*128}')
    a.label(f'{name}_end')
    a('s_endpgm')
    return 192
```

```python
import sys
from common import *
from gemm import gemm_body
from small import prep_body, ln2_kernel
from attn import attn_kernel
NAME='adaLN_cond__compressed_kv_cla__glu_gated_reglu__prompt'
hdr=open(f'cdna_kernels/{NAME}.s.ref').read().split('; Override launch')[0]
a=Asm(); descs=[]; launches=[]

def ld(a,reg,key): a(f's_load_dwordx2 s[{reg}:{reg+1}], s[0:1], {KA[key]}')

n='kvprep_kernel'; kernel_header(a,n)
a('s_cmp_ge_u32 s2, 544'); a(f's_cbranch_scc1 {n}_end')
a('s_cmp_lt_u32 s2, 256'); a(f's_cbranch_scc1 {n}_gemm')
a('s_sub_u32 s43, s2, 256')
prep_body(a,n+'_p')
a.label(f'{n}_end'); a('s_endpgm')
a.label(f'{n}_gemm')
ld(a,44,'ckv'); ld(a,46,'wuk'); ld(a,48,'wuv'); ld(a,50,'ws'); a('s_waitcnt lgkmcnt(0)')
a('s_and_b32 s41, s2, 7'); a('s_lshl_b32 s41, s41, 2'); a('s_lshr_b32 s35, s2, 3'); a('s_and_b32 s35, s35, 3'); a('s_add_u32 s41, s41, s35')
a('s_lshr_b32 s40, s2, 5'); a('s_lshl_b32 s40, s40, 8')
srd_from(a,4,44,0,2<<20)
a('s_cmp_ge_u32 s41, 16'); a(f's_cbranch_scc1 {n}_v')
a('s_lshl_b32 s41, s41, 8'); a('s_mov_b32 s42, s41')
srd_from(a,8,46,0,4<<20); srd_from(a,16,50,WS_K,16<<20)
PK=dict(BM=256,BN=256,WM=2,WN=4,KS=1,BK=64,NS=2,K=512,lda=1024,ldb=8192,ldc=8192,NB=1,kperm=0,orient='N',epi='perm')
nv1,lds1=gemm_body(a,PK,n+'_k')
a.label(f'{n}_v')
a('s_sub_u32 s41, s41, 16'); a('s_lshl_b32 s41, s41, 8'); a('s_mov_b32 s42, s41')
srd_from(a,8,48,0,4<<20); srd_from(a,16,50,WS_VT,16<<20)
nv2,_=gemm_body(a,dict(PK,orient='M',ldc=4096),n+'_v')
descs.append(kernel_desc(n,max(nv1,nv2,128))); launches.append((n,544,512,lds1))

n='qproj_kernel'; kernel_header(a,n)
a('s_cmp_ge_u32 s2, 256'); a(f's_cbranch_scc1 {n}_end')
ld(a,46,'wq'); ld(a,50,'ws'); a('s_waitcnt lgkmcnt(0)')
a('s_and_b32 s41, s2, 7'); a('s_lshl_b32 s41, s41, 2'); a('s_lshr_b32 s35, s2, 3'); a('s_and_b32 s35, s35, 3'); a('s_add_u32 s41, s41, s35')
a('s_lshl_b32 s41, s41, 7'); a('s_mov_b32 s42, s41')
a('s_lshr_b32 s40, s2, 5'); a('s_lshl_b32 s40, s40, 8')
srd_from(a,4,50,WS_H1,2<<20); srd_from(a,8,46,0,4<<20); srd_from(a,16,50,WS_Q,16<<20)
nv,lds=gemm_body(a,dict(PK,BN=128,WM=4,WN=2,NS=3),n)
a.label(f'{n}_end'); a('s_endpgm')
descs.append(kernel_desc(n,nv)); launches.append((n,256,512,lds))

n='attn_kernel'; nv=attn_kernel(a,n); descs.append(kernel_desc(n,nv)); launches.append((n,256,512,131072))

def resid_gemm(n,Aoff,Asz,lda,wkey,K,res,out,modoff,NS,BK):
    kernel_header(a,n)
    a('s_cmp_ge_u32 s2, 256'); a(f's_cbranch_scc1 {n}_end')
    ld(a,46,wkey); ld(a,50,'ws'); ld(a,44,'x'); ld(a,48,'out'); a('s_waitcnt lgkmcnt(0)')
    a('s_and_b32 s40, s2, 7'); a('s_lshl_b32 s40, s40, 2'); a('s_lshr_b32 s35, s2, 3'); a('s_and_b32 s35, s35, 3'); a('s_add_u32 s40, s40, s35')
    a('s_lshl_b32 s40, s40, 6'); a('s_lshr_b32 s41, s2, 5'); a('s_lshl_b32 s41, s41, 6'); a('s_mov_b32 s42, s41')
    srd_from(a,4,50,Aoff,Asz); srd_from(a,8,46,0,K*1024)
    if out=='x1': srd_from(a,16,50,WS_X1,2<<20); srd_from(a,20,44,0,2<<20)
    else: srd_from(a,16,48,0,2<<20); srd_from(a,20,50,WS_X1,2<<20)
    srd_from(a,24,50,WS_MOD+modoff,2048)
    nv,lds=gemm_body(a,dict(BM=64,BN=64,WM=2,WN=2,KS=2,BK=BK,NS=NS,K=K,lda=lda,ldb=1024,ldc=1024,NB=1,kperm=1,orient='N',epi='resid'),n)
    a.label(f'{n}_end'); a('s_endpgm')
    descs.append(kernel_desc(n,nv)); launches.append((n,256,512,lds))
resid_gemm('oproj_kernel',WS_CTX,16<<20,8192,'wo',4096,'x','x1',2*2048,4,128)
n='ln2_kernel'; nv=ln2_kernel(a,n); descs.append(kernel_desc(n,nv)); launches.append((n,256,64,0))
n='glu_kernel'; kernel_header(a,n)
a('s_cmp_ge_u32 s2, 224'); a(f's_cbranch_scc1 {n}_end')
ld(a,46,'wg'); ld(a,48,'wu'); ld(a,50,'ws'); a('s_waitcnt lgkmcnt(0)')
a('s_and_b32 s40, s2, 7'); a('s_lshl_b32 s40, s40, 8'); a('s_lshr_b32 s41, s2, 3'); a('s_lshl_b32 s41, s41, 6'); a('s_mov_b32 s42, s41')
srd_from(a,4,50,WS_H2,2<<20); srd_from(a,8,46,0,512*3584); srd_from(a,12,48,0,512*3584); srd_from(a,16,50,WS_HH,2048*3584)
nv,lds=gemm_body(a,dict(BM=256,BN=128,WM=4,WN=2,KS=1,BK=64,NS=3,K=512,lda=1024,ldb=3584,ldc=3584,NB=2,kperm=0,orient='N',epi='glu'),n)
a.label(f'{n}_end'); a('s_endpgm')
descs.append(kernel_desc(n,nv)); launches.append((n,224,512,lds))
resid_gemm('down_kernel',WS_HH,2048*3584,3584,'wd',1792,'x1','out',5*2048,4,128)

out=hdr+''.join(f'; @launch kernel={k} grid=({g},1,1) block=({b},1,1) lds={l}\n' for k,g,b,l in launches)
out+='.amdgcn_target "amdgcn-amd-amdhsa--gfx950"\n'+a.text()+''.join(descs)
open(sys.argv[1] if len(sys.argv)>1 else f'cdna_kernels/{NAME}.s','w').write(out)
print([ (k,g,b,l) for k,g,b,l in launches], len(out))
```

```python
from common import *
O=4; Q=68; SS=[100,132]; PP=164; FRG=180; AK=212; AV=220
VM=224; VL=225; VMX=226; VT=227; VMN=228; VAL=229; VNI=230; VDF=231; VKD=232; VVD=233; VLN=234; VQO=235; VL2=236; VX=237; VY=238; VZ=239
NV=244; VPF=240
import os
ADBG=int(os.environ['ADBG']) if 'ADBG' in os.environ else None
def attn_kernel(a,name):
    tsu=[0]
    def ts():
        if ADBG is None: return
        tsu[0]+=1; lb=f'{name}_ts{tsu[0]}'
        a('s_cmp_lg_u32 s90, 0'); a(f's_cbranch_scc1 {lb}')
        a('s_memtime s[92:93]'); a('s_waitcnt lgkmcnt(0)'); a('s_sub_u32 s92, s92, s88'); a('v_mov_b32 v1, s92'); a('v_mov_b32 v2, 0')
        a('s_and_b32 s91, s91, 0xfc')
        a('buffer_store_dword v1, v2, s[84:87], s91 offen'); a('s_add_u32 s91, s91, 4')
        a.label(lb)
    kernel_header(a,name)
    a('s_cmp_ge_u32 s2, 256'); a(f's_cbranch_scc1 {name}_end')
    a('s_load_dwordx2 s[20:21], s[0:1], %d'%KA['ws']); a('s_load_dwordx2 s[52:53], s[0:1], %d'%KA['wo'])
    a('s_load_dwordx2 s[54:55], s[0:1], %d'%KA['wg']); a('s_load_dwordx2 s[56:57], s[0:1], %d'%KA['wu']); a('s_load_dwordx2 s[58:59], s[0:1], %d'%KA['wd'])
    a('s_waitcnt lgkmcnt(0)')
    for i,(p,sz,blk,off) in enumerate(((52,4<<20,16384,0),(52,4<<20,16384,8192),(54,512*3584,7168,0),(56,512*3584,7168,0),(58,512*3584,7168,0))):
        d=60+4*i
        a(f's_mul_i32 s36, s2, {blk}')
        if off: a(f's_add_u32 s36, s36, {off}')
        a(f's_add_u32 s{d}, s{p}, s36'); a(f's_addc_u32 s{d+1}, s{p+1}, 0'); a(f's_sub_u32 s{d+2}, 0x{sz:x}, s36'); a(f's_mov_b32 s{d+3}, 0x00020000')
    srd_from(a,4,20,WS_Q,16<<20); srd_from(a,8,20,WS_K,16<<20); srd_from(a,12,20,WS_VT,16<<20); srd_from(a,16,20,WS_CTX,16<<20)
    a('v_lshrrev_b32 v1, 6, v0'); a(f'v_and_b32 v{VLN}, 63, v0'); a('s_nop 0'); a('v_readfirstlane_b32 s28, v1')
    if ADBG is not None:
        a('s_memtime s[88:89]'); a('s_load_dwordx2 s[84:85], s[0:1], 104'); a('s_waitcnt lgkmcnt(0)')
        a('s_mov_b32 s86, 256'); a('s_mov_b32 s87, 0x00020000'); a('s_mov_b32 s91, 0')
        a(f's_sub_u32 s90, s2, {ADBG}'); a('s_or_b32 s90, s90, s28')
    a('s_lshl_b32 s31, s28, 10'); a('s_lshr_b32 s33, s28, 2'); a('s_and_b32 s34, s28, 3')
    a('s_and_b32 s40, s2, 7'); a('s_lshl_b32 s40, s40, 2'); a('s_lshr_b32 s35, s2, 3'); a('s_and_b32 s35, s35, 3'); a('s_add_u32 s40, s40, s35')
    a('s_lshr_b32 s48, s2, 5')
    a('s_sub_u32 s41, 16, s48')
    a('s_sub_u32 s43, 15, s48'); a('s_lshl_b32 s49, s43, 20'); a('s_lshl_b32 s47, s48, 20')
    a('s_sub_u32 s39, s41, 2')
    a('s_cmp_lt_u32 s28, 4'); a(f's_cbranch_scc1 {name}_np'); a('s_setprio 1'); a.label(f'{name}_np')
    a('s_mov_b32 s46, 0x3e0293ee')
    a(f'v_mov_b32 v{VNI}, 0xff800000')
    a(f'v_lshrrev_b32 v1, 4, v{VLN}'); a('s_lshl_b32 s35, s28, 2'); a('v_add_u32 v1, s35, v1')
    a(f'v_and_b32 v2, 15, v{VLN}'); a('v_and_b32 v3, 15, v1'); a('v_xor_b32 v2, v2, v3'); a('v_lshlrev_b32 v2, 4, v2')
    a('s_lshl_b32 s35, s40, 8')
    a(f'v_lshl_add_u32 v{VKD}, v1, 13, v2'); a(f'v_add_u32 v{VKD}, s35, v{VKD}')
    a('s_lshl_b32 s35, s40, 19')
    a(f'v_lshl_add_u32 v{VVD}, v1, 12, v2'); a(f'v_add_u32 v{VVD}, s35, v{VVD}')
    a(f'v_and_b32 v1, 31, v{VLN}'); a(f'v_lshrrev_b32 v2, 5, v{VLN}'); a('v_and_b32 v3, 15, v1')
    a('v_lshlrev_b32 v1, 8, v1')
    a('s_lshl_b32 s35, s33, 14')
    for t in range(8):
        a(f'v_add_u32 v{VX}, {2*t}, v2'); a(f'v_xor_b32 v{VX}, v{VX}, v3'); a(f'v_lshl_add_u32 v{VX}, v{VX}, 4, v1')
        a(f'v_add_u32 v{AK+t}, s35, v{VX}')
    a('s_lshl_b32 s35, s33, 3')
    for u in range(4):
        a(f'v_add_u32 v{VX}, {2*u}, v2'); a(f'v_add_u32 v{VX}, s35, v{VX}'); a(f'v_xor_b32 v{VX}, v{VX}, v3'); a(f'v_lshl_add_u32 v{VX}, v{VX}, 4, v1')
        a(f'v_add_u32 v{AV+u}, 0x10000, v{VX}')
    a(f'v_and_b32 v1, 31, v{VLN}'); a('s_lshl_b32 s35, s34, 5'); a('s_lshl_b32 s36, s33, 6'); a('s_sub_u32 s35, s35, s36')
    a('v_lshlrev_b32 v3, 2, v2'); a(f'v_sub_u32 v{VDF}, v1, v3'); a(f'v_add_u32 v{VDF}, s35, v{VDF}')
    a('s_lshl_b32 s35, s34, 5'); a('v_add_u32 v1, s35, v1'); a('v_lshlrev_b32 v1, 13, v1'); a('v_lshl_add_u32 v1, v2, 4, v1')
    a('s_lshl_b32 s35, s40, 8'); a(f'v_add_u32 v{VQO}, s35, v1')

    uid=[0]
    def lab(p):
        uid[0]+=1; return f'{name}_{p}{uid[0]}'
    def dma_k(slot,cond):
        L=[]
        for j in range(4):
            x=[f's_add_u32 s36, s44, 0x{j*262144:x}',f's_add_u32 m0, s31, 0x{slot*32768+j*8192:x}','s_nop 0',f'buffer_load_dwordx4 v{VKD}, s[8:11], s36 offen lds']
            if j==3: x+=['s_add_u32 s44, s44, 0x100000','s_add_u32 s50, s50, 1','s_cmp_eq_u32 s50, s41','s_cselect_b32 s44, 0, s44']
            if cond:
                lb=lab('dk'); x=['s_cmp_ge_u32 s50, 17',f's_cbranch_scc1 {lb}']+x+[lb+':']
            L.append(x)
        return L
    def dma_v(slot,cond):
        L=[]
        for j in range(4):
            x=[f's_add_u32 s36, s45, 0x{j*131072:x}',f's_add_u32 m0, s31, 0x{65536+slot*32768+j*8192:x}','s_nop 0',f'buffer_load_dwordx4 v{VVD}, s[12:15], s36 offen lds']
            if j==3: x+=['s_add_u32 s45, s45, 256','s_add_u32 s51, s51, 1','s_cmp_eq_u32 s51, s41','s_cselect_b32 s45, 0, s45']
            if cond:
                lb=lab('dv'); x=['s_cmp_ge_u32 s51, 17',f's_cbranch_scc1 {lb}']+x+[lb+':']
            L.append(x)
        return L
    def emit(x):
        for y in x:
            if y.endswith(':') and ' ' not in y: a.label(y[:-1])
            else: a(y)
    def qdma(soff,base):
        L=[]
        for j in range(4):
            L+=[f's_add_u32 s36, {soff}, 0x{j*262144:x}',f's_add_u32 m0, s31, 0x{base+j*8192:x}','s_nop 0',f'buffer_load_dwordx4 v{VKD}, s[4:7], s36 offen lds']
        return L
    def qread(base):
        L=['s_lshl_b32 s36, s34, 13','s_lshl_b32 s37, s33, 14','s_sub_u32 s36, s36, s37',f's_add_u32 s36, s36, 0x{base:x}']
        L+=[f'v_add_u32 v{Q+4*t}, s36, v{AK+t}' for t in range(8)]
        L+=[f'ds_read_b128 v[{Q+4*t}:{Q+4*t+3}], v{Q+4*t}' for t in range(8)]
        return L
    def init_o():
        for i in range(64): a(f'v_mov_b32 v{O+i}, 0')
        a(f'v_mov_b32 v{VM}, 0xf149f2ca'); a(f'v_mov_b32 v{VL}, 0'); a(f'v_mov_b32 v{VL2}, 0')
    for r in (42,44,45,50,51): a(f's_mov_b32 s{r}, 0')
    for x in dma_k(0,False): emit(x)
    emit(qdma('s49',0x18000))
    for x in dma_k(1,False): emit(x)
    for x in dma_v(0,False): emit(x)
    emit(qdma('s47',0x20000))
    init_o()
    a('s_waitcnt vmcnt(12)'); a('s_barrier'); ts()
    emit(qread(0x18000))

    def frag(i): return FRG+4*(i%8)
    def qk_items(sset,slot):
        it=[]
        for t in range(8):
            for aa in range(2):
                c=SS[sset]+16*aa
                it.append((f'v{AK+t} offset:{slot*32768+aa*8192}', lambda f,c=c,t=t: f'v_mfma_f32_32x32x16_bf16 v[{c}:{c+15}], v[{f}:{f+3}], v[{Q+4*t}:{Q+4*t+3}], '+('0' if t==0 else f'v[{c}:{c+15}]')))
        return it
    def pv_items(slot):
        it=[]
        for u in range(4):
            for dt in range(4):
                c=O+16*dt
                it.append((f'v{AV+u} offset:{slot*32768+dt*8192}', lambda f,c=c,u=u: f'v_mfma_f32_32x32x16_bf16 v[{c}:{c+15}], v[{f}:{f+3}], v[{PP+4*u}:{PP+4*u+3}], v[{c}:{c+15}]'))
        return it
    def rd(i,it): a(f'ds_read_b128 v[{frag(i)}:{frag(i)+3}], {it[0]}')
    def run(items,nxt,valu,deadlines,gate_at,extra,gmode=0):
        n=len(items); vi=0; allit=items+nxt
        for i in range(n):
            nd=min([d for d in deadlines if d>=i],default=None)
            if nd is None: tgt=len(valu); slots=n-i
            else: tgt=deadlines[nd]; slots=nd-i+1
            q=-(-(tgt-vi)//slots) if tgt>vi else 0
            if nd is not None and nd==i: q=tgt-vi
            for _ in range(q):
                a(valu[vi]); vi+=1
            if nd==i: a('s_nop 1')
            if i==gate_at:
                if gmode==0: a('s_waitcnt vmcnt(0) lgkmcnt(0)')
                elif gmode==4: a('s_waitcnt vmcnt(4) lgkmcnt(0)')
                else:
                    lb=lab('g'); a('s_sub_u32 s36, s42, 2'); a('s_waitcnt vmcnt(1) lgkmcnt(0)'); a('s_cmp_lt_u32 s36, 5'); a(f's_cbranch_scc1 {lb}')
                    a('s_waitcnt vmcnt(0)'); a.label(lb)
                a('s_barrier'); ts()
            else:
                a('s_waitcnt lgkmcnt(7)')
            a(items[i][1](frag(i)))
            rd(i+8,allit[i+8])
            for x in extra.get(i,[]): emit(x)
        while vi<len(valu):
            a(valu[vi]); vi+=1
    it0=qk_items(0,0)
    for i in range(8): rd(i,it0[i])
    dk=dma_k(0,False)
    run(it0,qk_items(1,1)[:8],[],{},8,{8+j:[dk[j]] for j in range(4)},gmode=4)
    a('s_nop 7'); a('s_nop 7')
    THR='0x41000000'
    def softmax(sset,masked):
        s=SS[sset]; v=[]; marks=[]
        if masked:
            for b in range(8):
                for i in range(4):
                    e=4*b+i; aa,r=divmod(e,16); cst=32*aa+8*(r>>2)+(r&3)
                    v.append(f'v_cmp_gt_i32 s[{52+2*i}:{53+2*i}], {cst}, v{VDF}')
                for i in range(4):
                    e=4*b+i
                    v.append(f'v_cndmask_b32 v{s+e}, v{s+e}, v{VNI}, s[{52+2*i}:{53+2*i}]')
        v.append(f'v_max3_f32 v{VMX}, v{s}, v{s+1}, v{s+2}'); v.append(f'v_max3_f32 v{VT}, v{s+3}, v{s+4}, v{s+5}')
        k=6
        while k<32:
            d=VMX if (k//2)%2==1 else VT
            v.append(f'v_max3_f32 v{d}, v{d}, v{s+k}, v{s+k+1}'); k+=2
        v.append(f'v_max_f32 v{VMX}, v{VMX}, v{VT}')
        v.append(f'v_mov_b32 v{VT}, v{VMX}'); v.append(f'v_add_f32 v{VMN}, {THR}, v{VM}'); v.append('s_nop 0')
        v.append(f'v_permlane32_swap_b32 v{VT}, v{VMX}')
        v.append(f'v_max_f32 v{VMX}, v{VMX}, v{VT}')
        v.append(f'v_mul_f32 v{VMX}, s46, v{VMX}')
        v.append(f'v_cmp_gt_f32 vcc, v{VMX}, v{VMN}')
        lb=lab('nr')
        blk=['s_cmp_eq_u64 vcc, 0', f's_cbranch_scc1 {lb}', f'v_max_f32 v{VMN}, v{VM}, v{VMX}', f'v_sub_f32 v{VAL}, v{VM}, v{VMN}',
             f'v_mov_b32 v{VM}, v{VMN}', f'v_exp_f32 v{VAL}, v{VAL}','s_nop 0']
        blk+=[f'v_mul_f32 v{O+i}, v{O+i}, v{VAL}' for i in range(64)]
        blk+=[f'v_mul_f32 v{VL}, v{VL}, v{VAL}', f'v_mul_f32 v{VL2}, v{VL2}, v{VAL}']
        v.append('\n    '.join(blk)+f'\n{lb}:')
        for u in range(4):
            b=s+8*u
            for i in range(8): v.append(f'v_fma_f32 v{b+i}, v{b+i}, s46, -v{VM}')
            for i in range(8): v.append(f'v_exp_f32 v{b+i}, v{b+i}')
            for i in range(4): v.append(f'v_cvt_pk_bf16_f32 v{PP+4*u+i}, v{b+2*i}, v{b+2*i+1}')
            marks.append(len(v))
            for i in range(8): v.append(f'v_add_f32 v{VL if i%2==0 else VL2}, v{VL if i%2==0 else VL2}, v{b+i}')
        return v,marks
    def wpref():
        lb=lab('wp'); x=['s_sub_u32 s36, s42, 1','s_cmp_ge_u32 s36, 5',f's_cbranch_scc1 {lb}',f'v_lshlrev_b32 v{VX}, 4, v0',
            f'buffer_load_dwordx4 v[{VPF}:{VPF+3}], v{VX}, s[60:63], 0 offen']
        for i in range(8): x.append(f's_mov_b64 s[{60+2*i}:{61+2*i}], s[{64+2*i}:{65+2*i}]')
        return x+[lb+':']
    def body(par,masked):
        v,marks=softmax(par,masked)
        items=qk_items(par^1,par^1)+pv_items(par); dl={16+4*u:marks[u] for u in range(4)}
        D=dma_v(par^1,True)+dma_k(par^1,True)
        extra={8+j:[D[j]] for j in range(8)}
        if not masked:
            lb=lab('ql'); extra[18]=[['s_cmp_lg_u32 s42, s39',f's_cbranch_scc1 {lb}']+qread(0x20000)+[lb+':']]
            extra[20]=[wpref()]
        run(items,qk_items(par,par)[:8],v,dl,8,extra,gmode=0 if masked else 1)
    for par in range(2):
        a.label(f'{name}_loop{par}')
        a('s_cmp_eq_u32 s42, s43'); a(f's_cbranch_scc1 {name}_last{par}')
        body(par,False)
        a('s_add_u32 s42, s42, 1')
        if par==1: a(f's_branch {name}_loop0')
    a.label(f'{name}_last0'); body(0,True); a('s_mov_b32 s38, 0x10000'); a(f's_branch {name}_fin')
    a.label(f'{name}_last1'); body(1,True); a('s_mov_b32 s38, 0x18000')
    a.label(f'{name}_fin'); ts()
    a(f'v_add_f32 v{VL}, v{VL}, v{VL2}'); a(f'v_mov_b32 v{VT}, v{VL}'); a('s_nop 1')
    a(f'v_permlane32_swap_b32 v{VT}, v{VL}'); a(f'v_add_f32 v{VL}, v{VL}, v{VT}')
    a('s_lshl_b32 s35, s28, 9'); a('s_add_u32 s35, s35, 0x20000'); a(f'v_lshl_add_u32 v{VY}, v{VLN}, 3, s35')
    a('s_xor_b32 s35, s35, 0x800'); a(f'v_lshl_add_u32 v{VT}, v{VLN}, 3, s35')
    a(f'ds_write_b64 v{VY}, v[{VM}:{VL}]')
    a('s_lshl_b32 s35, s34, 13'); a('s_add_u32 s36, s35, s38'); a('s_add_u32 s35, s35, 0x20000')
    a('s_cmp_eq_u32 s33, 0'); a('s_cselect_b32 s37, s36, s35'); a('s_cselect_b32 s35, s35, s36')
    a(f'v_lshl_add_u32 v{VX}, v{VLN}, 4, s37'); a(f'v_lshl_add_u32 v{VZ}, v{VLN}, 4, s35')
    a('s_waitcnt lgkmcnt(0)'); a('s_barrier')
    a(f'ds_read_b64 v[{VMX}:{VMX+1}], v{VT}')
    def fin(kh):
        send=O+32*(1-kh); keep=O+32*kh
        if kh==0:
            for i in range(8): a(f'ds_write_b128 v{VX}, v[{send+4*i}:{send+4*i+3}] offset:{i*1024}')
        a('s_waitcnt lgkmcnt(0)'); a('s_barrier')
        if kh==1:
            for i in range(8): a(f'ds_write_b128 v{VX}, v[{send+4*i}:{send+4*i+3}] offset:{i*1024}')
        a(f'v_max_f32 v{VMN}, v{VM}, v{VMX}')
        a(f'v_sub_f32 v{VM}, v{VM}, v{VMN}'); a(f'v_sub_f32 v{VMX}, v{VMX}, v{VMN}')
        a(f'v_exp_f32 v{VM}, v{VM}'); a(f'v_exp_f32 v{VMX}, v{VMX}'); a('s_nop 0')
        a(f'v_mul_f32 v{VL}, v{VL}, v{VM}'); a(f'v_fmac_f32 v{VL}, v{VT}, v{VMX}')
        a(f'v_rcp_f32 v{VL}, v{VL}'); a('s_nop 0')
        a(f'v_mul_f32 v{VM}, v{VM}, v{VL}'); a(f'v_mul_f32 v{VMX}, v{VMX}, v{VL}')
        for i in range(32): a(f'v_mul_f32 v{keep+i}, v{keep+i}, v{VM}')
        a('s_waitcnt lgkmcnt(0)'); a('s_barrier')
        for i in range(8): a(f'ds_read_b128 v[{send+4*i}:{send+4*i+3}], v{VZ} offset:{i*1024}')
        for q in range(4):
            a(f's_waitcnt lgkmcnt({6-2*q})')
            for i in range(8): a(f'v_fmac_f32 v{keep+8*q+i}, v{send+8*q+i}, v{VMX}')
            t=PP+4*q
            for i in range(4): a(f'v_cvt_pk_bf16_f32 v{t+i}, v{keep+8*q+2*i}, v{keep+8*q+2*i+1}')
            a(f'buffer_store_dwordx4 v[{t}:{t+3}], v{VQO}, s[16:19], s49 offen offset:{128*kh+32*q}')
    a('s_cmp_eq_u32 s33, 0'); a(f's_cbranch_scc0 {name}_fin1')
    fin(0); a(f's_branch {name}_fin2')
    a.label(f'{name}_fin1'); fin(1)
    a.label(f'{name}_fin2'); ts()
    a('s_cmp_eq_u32 s42, 16'); a(f's_cbranch_scc1 {name}_end')
    a('s_add_u32 s42, s42, 1'); a('s_mov_b32 s43, 16'); a('s_mov_b32 s49, s47')
    init_o()
    a('s_cmp_eq_u32 s38, 0x10000'); a(f's_cbranch_scc1 {name}_loop1')
    a(f's_branch {name}_loop0')
    a.label(f'{name}_end')
    a('s_endpgm')
    return NV
```

```python
from common import *
O=4; Q=68; SS=[100,132]; PP=164; FRG=180; AK=212; AV=220
VM=224; VL=225; VMX=226; VT=227; VMN=228; VAL=229; VNI=230; VDF=231; VKD=232; VVD=233; VLN=234; VQO=235; VL2=236; VX=237; VY=238; VZ=239
NV=240
import os
ADBG=int(os.environ['ADBG']) if 'ADBG' in os.environ else None
def attn_kernel(a,name):
    tsu=[0]
    def ts():
        if ADBG is None: return
        tsu[0]+=1; lb=f'{name}_ts{tsu[0]}'
        a('s_cmp_lg_u32 s90, 0'); a(f's_cbranch_scc1 {lb}')
        a('s_memtime s[92:93]'); a('s_waitcnt lgkmcnt(0)'); a('s_sub_u32 s92, s92, s88'); a('v_mov_b32 v1, s92'); a('v_mov_b32 v2, 0')
        a('s_and_b32 s91, s91, 0xfc')
        a('buffer_store_dword v1, v2, s[84:87], s91 offen'); a('s_add_u32 s91, s91, 4')
        a.label(lb)
    kernel_header(a,name)
    a('s_cmp_ge_u32 s2, 256'); a(f's_cbranch_scc1 {name}_end')
    a('s_load_dwordx2 s[20:21], s[0:1], %d'%KA['ws']); a('s_waitcnt lgkmcnt(0)')
    srd_from(a,4,20,WS_Q,16<<20); srd_from(a,8,20,WS_K,16<<20); srd_from(a,12,20,WS_VT,16<<20); srd_from(a,16,20,WS_CTX,16<<20)
    a('v_lshrrev_b32 v1, 6, v0'); a(f'v_and_b32 v{VLN}, 63, v0'); a('s_nop 0'); a('v_readfirstlane_b32 s28, v1')
    if ADBG is not None:
        a('s_memtime s[88:89]'); a('s_load_dwordx2 s[84:85], s[0:1], 104'); a('s_waitcnt lgkmcnt(0)')
        a('s_mov_b32 s86, 256'); a('s_mov_b32 s87, 0x00020000'); a('s_mov_b32 s91, 0')
        a(f's_sub_u32 s90, s2, {ADBG}'); a('s_or_b32 s90, s90, s28')
    a('s_lshl_b32 s31, s28, 10'); a('s_lshr_b32 s33, s28, 2'); a('s_and_b32 s34, s28, 3')
    a('s_and_b32 s40, s2, 7'); a('s_lshl_b32 s40, s40, 2'); a('s_lshr_b32 s35, s2, 3'); a('s_and_b32 s35, s35, 3'); a('s_add_u32 s40, s40, s35')
    a('s_lshr_b32 s48, s2, 5')
    a('s_sub_u32 s41, 15, s48')
    a('s_mov_b32 s47, 0')
    a('s_mov_b32 s46, 0x3e0293ee')
    a(f'v_mov_b32 v{VNI}, 0xff800000')
    a(f'v_lshrrev_b32 v1, 4, v{VLN}'); a('s_lshl_b32 s35, s28, 2'); a('v_add_u32 v1, s35, v1')
    a(f'v_and_b32 v2, 15, v{VLN}'); a('v_and_b32 v3, 15, v1'); a('v_xor_b32 v2, v2, v3'); a('v_lshlrev_b32 v2, 4, v2')
    a('s_lshl_b32 s35, s40, 8')
    a(f'v_lshl_add_u32 v{VKD}, v1, 13, v2'); a(f'v_add_u32 v{VKD}, s35, v{VKD}')
    a('s_lshl_b32 s35, s40, 19')
    a(f'v_lshl_add_u32 v{VVD}, v1, 12, v2'); a(f'v_add_u32 v{VVD}, s35, v{VVD}')
    a(f'v_and_b32 v1, 31, v{VLN}'); a(f'v_lshrrev_b32 v2, 5, v{VLN}'); a('v_and_b32 v3, 15, v1')
    a('v_lshlrev_b32 v1, 8, v1')
    a('s_lshl_b32 s35, s33, 14')
    for t in range(8):
        a(f'v_add_u32 v{VX}, {2*t}, v2'); a(f'v_xor_b32 v{VX}, v{VX}, v3'); a(f'v_lshl_add_u32 v{VX}, v{VX}, 4, v1')
        a(f'v_add_u32 v{AK+t}, s35, v{VX}')
    a('s_lshl_b32 s35, s33, 3')
    for u in range(4):
        a(f'v_add_u32 v{VX}, {2*u}, v2'); a(f'v_add_u32 v{VX}, s35, v{VX}'); a(f'v_xor_b32 v{VX}, v{VX}, v3'); a(f'v_lshl_add_u32 v{VX}, v{VX}, 4, v1')
        a(f'v_add_u32 v{AV+u}, 0x10000, v{VX}')
    a(f'v_and_b32 v1, 31, v{VLN}'); a('s_lshl_b32 s35, s34, 5'); a('s_lshl_b32 s36, s33, 6'); a('s_sub_u32 s35, s35, s36')
    a('v_lshlrev_b32 v3, 2, v2'); a(f'v_sub_u32 v{VDF}, v1, v3'); a(f'v_add_u32 v{VDF}, s35, v{VDF}')
    a('s_lshl_b32 s35, s34, 5'); a('v_add_u32 v1, s35, v1'); a('v_lshlrev_b32 v1, 13, v1'); a('v_lshl_add_u32 v1, v2, 4, v1')
    a('s_lshl_b32 s35, s40, 8'); a(f'v_add_u32 v{VQO}, s35, v1')

    def dma_k(slot):
        for j in range(4):
            a(f's_add_u32 s36, s44, 0x{j*262144:x}'); a(f's_add_u32 m0, s31, 0x{slot*32768+j*8192:x}'); a('s_nop 0')
            a(f'buffer_load_dwordx4 v{VKD}, s[8:11], s36 offen lds')
        a('s_add_u32 s44, s44, 0x100000')
    def dma_v(slot):
        for j in range(4):
            a(f's_add_u32 s36, s45, 0x{j*131072:x}'); a(f's_add_u32 m0, s31, 0x{65536+slot*32768+j*8192:x}'); a('s_nop 0')
            a(f'buffer_load_dwordx4 v{VVD}, s[12:15], s36 offen lds')
        a('s_add_u32 s45, s45, 256')

    a.label(f'{name}_tile')
    a('s_add_u32 s42, s41, 1'); a('s_mov_b32 s43, 0'); a('s_mov_b32 s44, 0'); a('s_mov_b32 s45, 0')
    a('s_lshl_b32 s49, s41, 20')
    dma_k(0)
    for t in range(8):
        a(f'buffer_load_dwordx4 v[{Q+4*t}:{Q+4*t+3}], v{VQO}, s[4:7], s49 offen offset:{32*t}')
    dma_v(0)
    a('s_cmp_lt_u32 s42, 2'); a(f's_cbranch_scc1 {name}_nok1')
    dma_k(1)
    a.label(f'{name}_nok1')
    for i in range(64): a(f'v_mov_b32 v{O+i}, 0')
    a(f'v_mov_b32 v{VM}, 0xf149f2ca'); a(f'v_mov_b32 v{VL}, 0'); a(f'v_mov_b32 v{VL2}, 0')
    a('s_waitcnt vmcnt(4)')
    a('s_waitcnt vmcnt(0)')
    a('s_barrier')

    def frag(i): return FRG+4*(i%8)
    def qk_items(sset,slot):
        it=[]
        for t in range(8):
            for aa in range(2):
                c=SS[sset]+16*aa
                it.append((f'v{AK+t} offset:{slot*32768+aa*8192}', lambda f,c=c,t=t: f'v_mfma_f32_32x32x16_bf16 v[{c}:{c+15}], v[{f}:{f+3}], v[{Q+4*t}:{Q+4*t+3}], '+('0' if t==0 else f'v[{c}:{c+15}]')))
        return it
    def pv_items(slot):
        it=[]
        for u in range(4):
            for dt in range(4):
                c=O+16*dt
                it.append((f'v{AV+u} offset:{slot*32768+dt*8192}', lambda f,c=c,u=u: f'v_mfma_f32_32x32x16_bf16 v[{c}:{c+15}], v[{f}:{f+3}], v[{PP+4*u}:{PP+4*u+3}], v[{c}:{c+15}]'))
        return it
    DIST=5
    def run(items,valu,deadlines):
        n=len(items); vi=0
        for i in range(min(DIST,n)):
            a(f'ds_read_b128 v[{frag(i)}:{frag(i)+3}], {items[i][0]}')
        for i in range(n):
            nd=min([d for d in deadlines if d>=i],default=None)
            if nd is None: tgt=len(valu); slots=n-i
            else: tgt=deadlines[nd]; slots=nd-i+1
            q=-(-(tgt-vi)//slots) if tgt>vi else 0
            if nd is not None and nd==i: q=tgt-vi
            for _ in range(q):
                x=valu[vi]; vi+=1
                if isinstance(x,tuple): a.label(x[1])
                else: a(x)
            if nd==i: a('s_nop 1')
            issued=min(n,i+DIST)
            a(f's_waitcnt lgkmcnt({issued-i-1})')
            a(items[i][1](frag(i)))
            if i+DIST<n:
                a(f'ds_read_b128 v[{frag(i+DIST)}:{frag(i+DIST)+3}], {items[i+DIST][0]}')
        while vi<len(valu):
            x=valu[vi]; vi+=1
            if isinstance(x,tuple): a.label(x[1])
            else: a(x)
    ts()
    run(qk_items(0,0),[],{})
    a.nop(16)
    uid=[0]
    def softmax(sset,masked):
        s=SS[sset]; v=[]; marks=[]
        if masked:
            for b in range(8):
                for i in range(4):
                    e=4*b+i; aa,r=divmod(e,16); cst=32*aa+8*(r>>2)+(r&3)
                    v.append(f'v_cmp_gt_i32 s[{52+2*i}:{53+2*i}], {cst}, v{VDF}')
                for i in range(4):
                    e=4*b+i
                    v.append(f'v_cndmask_b32 v{s+e}, v{s+e}, v{VNI}, s[{52+2*i}:{53+2*i}]')
        v.append(f'v_max3_f32 v{VMX}, v{s}, v{s+1}, v{s+2}'); v.append(f'v_max3_f32 v{VT}, v{s+3}, v{s+4}, v{s+5}')
        k=6
        while k<32:
            d=VMX if (k//2)%2==1 else VT
            v.append(f'v_max3_f32 v{d}, v{d}, v{s+k}, v{s+k+1}'); k+=2
        v.append(f'v_max_f32 v{VMX}, v{VMX}, v{VT}')
        v.append(f'v_mov_b32 v{VT}, v{VMX}'); v.append('s_nop 1')
        v.append(f'v_permlane32_swap_b32 v{VT}, v{VMX}')
        v.append(f'v_max_f32 v{VMX}, v{VMX}, v{VT}')
        v.append(f'v_mul_f32 v{VMX}, s46, v{VMX}')
        v.append(f'v_max_f32 v{VMN}, v{VM}, v{VMX}')
        v.append(f'v_cmp_gt_f32 vcc, v{VMN}, v{VM}')
        v.append(f'v_sub_f32 v{VAL}, v{VM}, v{VMN}')
        v.append(f'v_mov_b32 v{VM}, v{VMN}')
        uid[0]+=1; lb=f'{name}_nr{uid[0]}'
        blk=['s_cmp_eq_u64 vcc, 0', f's_cbranch_scc1 {lb}', f'v_exp_f32 v{VAL}, v{VAL}','s_nop 0']
        blk+=[f'v_mul_f32 v{O+i}, v{O+i}, v{VAL}' for i in range(64)]
        blk+=[f'v_mul_f32 v{VL}, v{VL}, v{VAL}', f'v_mul_f32 v{VL2}, v{VL2}, v{VAL}']
        v.append('\n    '.join(blk)+f'\n{lb}:')
        for u in range(4):
            b=s+8*u
            for i in range(8): v.append(f'v_fma_f32 v{b+i}, v{b+i}, s46, -v{VMN}')
            for i in range(8): v.append(f'v_exp_f32 v{b+i}, v{b+i}')
            for i in range(4): v.append(f'v_cvt_pk_bf16_f32 v{PP+4*u+i}, v{b+2*i}, v{b+2*i+1}')
            marks.append(len(v))
            for i in range(8): v.append(f'v_add_f32 v{VL if i%2==0 else VL2}, v{VL if i%2==0 else VL2}, v{b+i}')
        return v,marks
    def body(par,last):
        a('s_waitcnt vmcnt(0)'); a('s_barrier'); ts()
        if not last:
            a('s_add_u32 s36, s43, 2'); a('s_cmp_ge_u32 s36, s42'); uid[0]+=1; lb=f'{name}_nk{uid[0]}'
            a(f's_cbranch_scc1 {lb}'); dma_k(par); a.label(lb)
            dma_v(par^1)
        v,marks=softmax(par,last)
        if last:
            items=pv_items(par); dl={4*u:marks[u] for u in range(4)}
        else:
            items=qk_items(par^1,par^1)+pv_items(par); dl={16+4*u:marks[u] for u in range(4)}
        run(items,v,dl)
    a.label(f'{name}_loop0')
    a('s_add_u32 s36, s43, 1'); a('s_cmp_ge_u32 s36, s42'); a(f's_cbranch_scc1 {name}_last0')
    body(0,False)
    a('s_add_u32 s43, s43, 1')
    a('s_add_u32 s36, s43, 1'); a('s_cmp_ge_u32 s36, s42'); a(f's_cbranch_scc1 {name}_last1')
    body(1,False)
    a('s_add_u32 s43, s43, 1')
    a(f's_branch {name}_loop0')
    a.label(f'{name}_last0'); body(0,True); a(f's_branch {name}_fin')
    a.label(f'{name}_last1'); body(1,True)
    a.label(f'{name}_fin'); ts()
    a(f'v_add_f32 v{VL}, v{VL}, v{VL2}'); a(f'v_mov_b32 v{VT}, v{VL}'); a('s_nop 1')
    a(f'v_permlane32_swap_b32 v{VT}, v{VL}'); a(f'v_add_f32 v{VL}, v{VL}, v{VT}')
    a.nop(12)
    a('s_barrier')
    a('s_mul_i32 s35, s28, 8704'); a(f'v_lshl_add_u32 v{VX}, v{VLN}, 4, s35'); a(f'v_lshl_add_u32 v{VY}, v{VLN}, 3, s35')
    a('s_xor_b32 s35, s28, 4'); a('s_mul_i32 s35, s35, 8704'); a(f'v_lshl_add_u32 v{VZ}, v{VLN}, 4, s35'); a(f'v_lshl_add_u32 v{VT}, v{VLN}, 3, s35')
    a(f'ds_write_b64 v{VY}, v[{VM}:{VL}] offset:8192')
    R=SS[0]
    def fin(kh):
        send=O+32*(1-kh); keep=O+32*kh
        for i in range(8): a(f'ds_write_b128 v{VX}, v[{send+4*i}:{send+4*i+3}] offset:{i*1024}')
        a('s_waitcnt lgkmcnt(0)'); a('s_barrier')
        a(f'ds_read_b64 v[{VMX}:{VMX+1}], v{VT} offset:8192')
        for i in range(8): a(f'ds_read_b128 v[{R+4*i}:{R+4*i+3}], v{VZ} offset:{i*1024}')
        a('s_waitcnt lgkmcnt(8)')
        a(f'v_max_f32 v{VMN}, v{VM}, v{VMX}')
        a(f'v_sub_f32 v{VM}, v{VM}, v{VMN}'); a(f'v_sub_f32 v{VMX}, v{VMX}, v{VMN}')
        a(f'v_exp_f32 v{VM}, v{VM}'); a(f'v_exp_f32 v{VMX}, v{VMX}'); a('s_nop 0')
        a(f'v_mul_f32 v{VL}, v{VL}, v{VM}'); a(f'v_fmac_f32 v{VL}, v{VT}, v{VMX}')
        a(f'v_rcp_f32 v{VL}, v{VL}'); a('s_nop 0')
        a(f'v_mul_f32 v{VM}, v{VM}, v{VL}'); a(f'v_mul_f32 v{VMX}, v{VMX}, v{VL}')
        a('s_waitcnt lgkmcnt(0)')
        for i in range(32):
            a(f'v_mul_f32 v{keep+i}, v{keep+i}, v{VM}'); a(f'v_fmac_f32 v{keep+i}, v{R+i}, v{VMX}')
        for q in range(4):
            t=SS[1]+4*q
            for i in range(4): a(f'v_cvt_pk_bf16_f32 v{t+i}, v{keep+8*q+2*i}, v{keep+8*q+2*i+1}')
            a(f'buffer_store_dwordx4 v[{t}:{t+3}], v{VQO}, s[16:19], s49 offen offset:{128*kh+32*q}')
    a('s_cmp_eq_u32 s33, 0'); a(f's_cbranch_scc0 {name}_fin1')
    fin(0); a(f's_branch {name}_fin2')
    a.label(f'{name}_fin1'); fin(1)
    a.label(f'{name}_fin2'); ts()
    a('s_cmp_eq_u32 s47, 1'); a(f's_cbranch_scc1 {name}_end')
    a('s_mov_b32 s47, 1'); a('s_mov_b32 s41, s48')
    a('s_barrier')
    a(f's_branch {name}_tile')
    a.label(f'{name}_end')
    a('s_endpgm')
    return NV
```

```python
from common import *
import os
ROT=int(os.environ.get('ROT','1'))

def gemm_body(a, P, pfx):
    BM,BN,WM,WN,KS,BK,NS,K=[P[k] for k in ('BM','BN','WM','WN','KS','BK','NS','K')]
    lda,ldb,ldc,NB,kperm,orient,epi=[P[k] for k in ('lda','ldb','ldc','NB','kperm','orient','epi')]
    assert WM*WN*KS==8
    dbg=P.get('dbg',None); tsn=[0]; tsc=[0]; TB=88 if P.get('hook') else 60
    def ts():
        if dbg is None or tsn[0]>=15: return
        if TB!=60:
            tsc[0]+=1
            if tsc[0] not in (1,4,5,7,9,12): return
        a(f's_memtime s[{TB+2*tsn[0]}:{TB+1+2*tsn[0]}]'); tsn[0]+=1
    def ts_dump():
        if dbg is None: return
        a('s_waitcnt vmcnt(0)'); ts(); TB==60 and a('s_memrealtime s[94:95]'); a('s_waitcnt lgkmcnt(0)')
        a(f's_cmp_lg_u32 s2, {dbg}'); a(f's_cbranch_scc1 {pfx}_nodump')
        a('s_load_dwordx2 s[56:57], s[0:1], 104'); a('s_waitcnt lgkmcnt(0)')
        a('s_mov_b32 s58, 256'); a('s_mov_b32 s59, 0x00020000'); a('v_mov_b32 v2, 0')
        a('s_lshl_b32 s35, s28, 2'); a('v_mov_b32 v1, s60'); a('buffer_store_dword v1, v2, s[56:59], s35 offen offset:64')
        a('v_mov_b32 v1, s70'); a('buffer_store_dword v1, v2, s[56:59], s35 offen offset:96')
        a('s_cmp_lg_u32 s28, 0'); a(f's_cbranch_scc1 {pfx}_nodump')
        for i in range(tsn[0]):
            a(f's_sub_u32 s35, s{TB+2*i}, s{TB}'); a('v_mov_b32 v1, s35')
            a(f'buffer_store_dword v1, v2, s[56:59], 0 offen offset:{4*i}')
        a('s_sub_u32 s35, s94, s92'); a('v_mov_b32 v1, s35')
        a(f'buffer_store_dword v1, v2, s[56:59], 0 offen offset:60')
        a.label(f'{pfx}_nodump')
    ts()
    if dbg is not None and TB==60: a('s_memrealtime s[92:93]')
    TM,TN=BM//WM,BN//WN; nmt,nnt=TM//32,TN//32
    rowA=BK*2; rowB=BN*2//NB
    szA=BM*rowA; szB=BK*rowB; stage=szA+NB*szB
    nst=K//BK; S=BK//16//KS
    nA=szA//1024//8; nBs=szB//1024//8
    assert szA%8192==0 and szB%8192==0, (szA,szB)
    ndma=nA+NB*nBs
    assert NS*stage<=163840
    ACC=2+0; ACC=4
    nacc=16*nmt*nnt
    FR=ACC+nacc; fsz=4*(nmt+nnt)
    cur=FR+2*fsz
    def alloc(n=1):
        nonlocal cur
        r=cur; cur+=n; return r
    vAd=[alloc() for _ in range(nA)]; vBd=[alloc() for _ in range(nBs)]
    vl=alloc(); vt0=alloc(); vt1=alloc(); vt2=alloc(); vt3=alloc()
    a('v_lshrrev_b32 v1, 6, v0'); a(f'v_and_b32 v{vl}, 63, v0'); a('s_nop 0'); a('v_readfirstlane_b32 s28, v1')
    a(f's_lshl_b32 s31, s28, 10')
    nw=WM*WN
    a(f's_lshr_b32 s33, s28, {nw.bit_length()-1}')
    a(f's_and_b32 s34, s28, {nw-1}')
    a(f's_and_b32 s35, s34, {WM-1}')
    a(f's_lshr_b32 s36, s34, {WM.bit_length()-1}')
    lpr=rowA//16; RA=1024//rowA
    a(f'v_lshrrev_b32 v{vt0}, {lpr.bit_length()-1}, v{vl}')
    a(f's_mul_i32 s37, s28, {RA}')
    a(f'v_add_u32 v{vt0}, s37, v{vt0}')
    a(f'v_and_b32 v{vt1}, {lpr-1}, v{vl}')
    if rowA==128:
        a(f'v_lshrrev_b32 v{vt2}, 1, v{vt0}'); a(f'v_and_b32 v{vt2}, 7, v{vt2}')
    else:
        a(f'v_and_b32 v{vt2}, 15, v{vt0}')
    a(f'v_xor_b32 v{vt1}, v{vt1}, v{vt2}'); a(f'v_lshlrev_b32 v{vt1}, 4, v{vt1}')
    a(f'v_add_u32 v{vt0}, s40, v{vt0}')
    a(f's_mov_b32 s37, {lda}')
    a(f'v_mul_lo_u32 v{vt0}, v{vt0}, s37')
    a(f'v_add_u32 v{vAd[0]}, v{vt0}, v{vt1}')
    for j in range(1,nA):
        a(f'v_add_u32 v{vAd[j]}, 0x{j*8*RA*lda:x}, v{vAd[0]}')
    lpr=rowB//16; RB=1024//rowB
    a(f'v_lshrrev_b32 v{vt0}, {lpr.bit_length()-1}, v{vl}')
    a(f's_mul_i32 s37, s28, {RB}')
    a(f'v_add_u32 v{vt0}, s37, v{vt0}')
    a(f'v_and_b32 v{vt1}, {lpr-1}, v{vl}')
    if rowB==128:
        a(f'v_lshrrev_b32 v{vt2}, 1, v{vt0}'); a(f'v_and_b32 v{vt2}, 1, v{vt2}')
    else:
        a(f'v_and_b32 v{vt2}, 3, v{vt0}')
    a(f'v_lshlrev_b32 v{vt2}, 2, v{vt2}')
    a(f'v_xor_b32 v{vt1}, v{vt1}, v{vt2}'); a(f'v_lshlrev_b32 v{vt1}, 4, v{vt1}')
    a(f's_mov_b32 s37, {ldb}')
    a(f'v_mul_lo_u32 v{vt0}, v{vt0}, s37')
    a(f's_lshl_b32 s37, s41, 1')
    a(f'v_add3_u32 v{vBd[0]}, v{vt0}, v{vt1}, s37')
    for j in range(1,nBs):
        a(f'v_add_u32 v{vBd[j]}, 0x{j*8*RB*ldb:x}, v{vBd[0]}')
    if not P.get('ksplit'): a('s_mov_b32 s43, 0')
    if ROT:
        a('s_lshr_b32 s49, s2, 3')
        if nst&(nst-1)==0: a(f's_and_b32 s49, s49, {nst-1}')
        else:
            a(f's_and_b32 s49, s49, 15'); a(f's_cmp_ge_u32 s49, {nst}'); a(f's_cselect_b32 s49, 0, s49')
    else: a('s_mov_b32 s49, 0')
    KADV=[f's_mul_i32 s30, s49, {BK}','s_add_u32 s30, s30, s43','s_lshl_b32 s29, s30, 1',f's_mul_i32 s30, s30, {ldb}']
    for x in KADV: a(x)
    def dma_list(dst):
        L=[]
        for j in range(nA):
            L.append([f's_add_u32 m0, {dst}, 0x{j*8192:x}','s_nop 0',f'buffer_load_dwordx4 v{vAd[j]}, s[4:7], s29 offen lds'])
        for sb in range(NB):
            for j in range(nBs):
                L.append([f's_add_u32 m0, {dst}, 0x{szA+sb*szB+j*8192:x}','s_nop 0',f'buffer_load_dwordx4 v{vBd[j]}, s[{8+4*sb}:{11+4*sb}], s30 offen lds'])
        L[-1]=L[-1]+['s_add_u32 s49, s49, 1',f's_cmp_ge_u32 s49, {nst}','s_cselect_b32 s49, 0, s49']+KADV
        return L
    assert nst>=NS
    if P.get('hook0'): P['hook0']()
    ts()
    for st in range(NS):
        a(f's_add_u32 s44, s31, 0x{st*stage:x}')
        for d in dma_list('s44'):
            for x in d: a(x)
        if st==0: ts()
    a('s_mov_b32 s44, s31')
    a('s_mov_b32 s45, 0'); a(f's_mov_b32 s48, 0x{stage:x}')
    ts()
    if P.get('hook'): P['hook'](NS*ndma)
    nwin=1
    assert stage<=65536
    vAr=[[alloc() for _ in range(S)] for _ in range(nwin)]
    vBr=[[alloc() for _ in range(nnt)] for _ in range(nwin)]
    a(f'v_and_b32 v{vt0}, 31, v{vl}'); a(f'v_lshrrev_b32 v{vt1}, 5, v{vl}')
    if rowA==128:
        a(f'v_lshrrev_b32 v{vt2}, 1, v{vt0}'); a(f'v_and_b32 v{vt2}, 7, v{vt2}')
    else:
        a(f'v_and_b32 v{vt2}, 15, v{vt0}')
    a(f's_mul_i32 s37, s35, {TM}')
    a(f'v_add_u32 v{vt0}, s37, v{vt0}')
    a(f'v_lshlrev_b32 v{vt0}, {rowA.bit_length()-1}, v{vt0}')
    a(f's_mul_i32 s37, s33, {2*S}')
    a(f'v_add_u32 v{vt1}, s37, v{vt1}')
    for tt in range(S):
        a(f'v_add_u32 v{vt3}, {2*tt}, v{vt1}')
        a(f'v_xor_b32 v{vt3}, v{vt3}, v{vt2}')
        a(f'v_lshl_add_u32 v{vAr[0][tt]}, v{vt3}, 4, v{vt0}')
        for w in range(1,nwin):
            a(f'v_add_u32 v{vAr[w][tt]}, 0x{w*65536:x}, v{vAr[0][tt]}')
    a(f'v_bfe_u32 v{vt0}, v{vl}, 2, 2')
    a(f'v_lshrrev_b32 v{vt1}, 5, v{vl}')
    a(f'v_lshlrev_b32 v{vt1}, {2 if kperm else 3}, v{vt1}')
    a(f'v_add_u32 v{vt1}, v{vt1}, v{vt0}')
    a(f's_mul_i32 s37, s33, {16*S}')
    a(f'v_add_u32 v{vt1}, s37, v{vt1}')
    a(f'v_lshlrev_b32 v{vt1}, {rowB.bit_length()-1}, v{vt1}')
    a(f'v_and_b32 v{vt2}, 3, v{vl}'); a(f'v_lshlrev_b32 v{vt2}, 3, v{vt2}')
    a(f'v_add_u32 v{vt1}, v{vt1}, v{vt2}')
    a(f'v_bfe_u32 v{vt2}, v{vl}, 4, 1'); a(f'v_lshlrev_b32 v{vt2}, 5, v{vt2}')
    a(f'v_add_u32 v{vt1}, v{vt1}, v{vt2}')
    if rowB==128:
        a(f'v_lshrrev_b32 v{vt0}, 1, v{vt0}')
    a(f's_mul_i32 s37, s36, {nnt//NB}')
    for nt in range(nnt):
        sb=nt%NB
        a(f's_add_u32 s38, s37, {nt//NB}')
        a(f'v_xor_b32 v{vt2}, s38, v{vt0}')
        a(f'v_lshl_add_u32 v{vt2}, v{vt2}, 6, v{vt1}')
        for w in range(nwin):
            a(f'v_add_u32 v{vBr[w][nt]}, 0x{w*65536+szA+sb*szB:x}, v{vt2}')
    nrd=nmt+2*nnt
    def reads(tt,par):
        f=FR+par*fsz
        for mt in range(nmt):
            a(f'ds_read_b128 v[{f+4*mt}:{f+4*mt+3}], v{vAr[0][tt]} offset:{mt*32*rowA}')
        for nt in range(nnt):
            for e in range(2):
                off=(16*tt+e*(8 if kperm else 4))*rowB
                r=f+4*nmt+4*nt+2*e
                a(f'ds_read_b64_tr_b16 v[{r}:{r+1}], v{vBr[0][nt]} offset:{off}')
    def mfma_list(par,first):
        f=FR+par*fsz; L=[]
        for mt in range(nmt):
            for nt in range(nnt):
                c=ACC+16*(mt*nnt+nt); fa=f+4*mt; fb=f+4*nmt+4*nt
                x,y=(fb,fa) if orient=='N' else (fa,fb)
                src='0' if first else f'v[{c}:{c+15}]'
                L.append(f'v_mfma_f32_32x32x16_bf16 v[{c}:{c+15}], v[{x}:{x+3}], v[{y}:{y+3}], {src}')
        return L
    assert S%2==0
    nm=nmt*nnt
    def stage_body(first,dma,outst,lastst):
        D=dma_list('s44') if dma else []
        if dma:
            D[-1]=D[-1]+[f's_add_u32 s44, s44, 0x{stage:x}',f's_sub_u32 s46, s44, s31',f's_cmp_ge_u32 s46, 0x{NS*stage:x}',f's_cselect_b32 s44, s31, s44']
        di=[0]
        def emit_m(L,frac):
            for m in L:
                a(m)
                if di[0]<len(D):
                    for x in D[di[0]]: a(x)
                    di[0]+=1
        for tt in range(S):
            par=tt&1; M=mfma_list(par,first and tt==0)
            if tt<S-1:
                reads(tt+1,par^1); a(f's_waitcnt lgkmcnt({nrd})'); emit_m(M,1)
            elif lastst:
                a('s_waitcnt lgkmcnt(0)'); emit_m(M,1)
            else:
                a('s_waitcnt lgkmcnt(0)')
                h=nm//2
                emit_m(M[:h],1)
                while di[0]<len(D):
                    for x in D[di[0]]: a(x)
                    di[0]+=1
                a(f's_add_u32 s45, s45, 0x{stage:x}'); a(f's_cmp_ge_u32 s45, 0x{NS*stage:x}')
                a(f's_cselect_b32 s46, 0x{(-(NS-1)*stage)&0xffffffff:x}, s48')
                a('s_cselect_b32 s45, 0, s45')
                for r in vAr[0]+vBr[0]: a(f'v_add_u32 v{r}, s46, v{r}')
                a(f's_waitcnt vmcnt({outst})'); a('s_barrier')
                reads(0,0)
                emit_m(M[h:],1)
    hk=1 if P.get('hook') else 0
    ts(); a(f's_waitcnt vmcnt({(NS-1)*ndma+hk})'); ts(); a('s_barrier'); ts()
    reads(0,0)
    stage_body(True,False,(NS-2)*ndma+(1 if P.get('hook') else 0),False); ts()
    nloop=nst-NS
    if nloop>1:
        a(f's_mov_b32 s47, {nloop}')
        a.label(f'{pfx}_loop')
        stage_body(False,True,(NS-2)*ndma,False)
        a('s_sub_u32 s47, s47, 1'); a('s_cmp_lg_u32 s47, 0'); a(f's_cbranch_scc1 {pfx}_loop')
    elif nloop==1:
        stage_body(False,True,(NS-2)*ndma,False)
    ts()
    for st in range(nst-NS+1,nst):
        stage_body(False,False,max(nst-2-st,0)*ndma,st==nst-1)
    a.nop(20)
    ts()
    if KS==2:
        a('s_barrier')
        a(f's_and_b32 s37, s28, {nw-1}'); a(f's_mul_i32 s37, s37, {nacc*256}')
        a(f'v_lshl_add_u32 v{vt0}, v{vl}, 4, s37')
        a('s_cmp_eq_u32 s33, 0'); a(f's_cbranch_scc1 {pfx}_red0')
        for i in range(nacc//4):
            a(f'ds_write_b128 v{vt0}, v[{ACC+4*i}:{ACC+4*i+3}] offset:{i*1024}')
        a('s_waitcnt lgkmcnt(0)'); a('s_barrier'); a('s_endpgm')
        a.label(f'{pfx}_red0')
        a('s_barrier')
        assert nacc<=2*fsz
        for i in range(nacc//4):
            a(f'ds_read_b128 v[{FR+4*i}:{FR+4*i+3}], v{vt0} offset:{i*1024}')
        a('s_waitcnt lgkmcnt(0)')
        for i in range(nacc):
            a(f'v_add_f32 v{ACC+i}, v{ACC+i}, v{FR+i}')
    a(f'v_and_b32 v{vt0}, 31, v{vl}'); a(f'v_lshrrev_b32 v{vt1}, 5, v{vl}')
    a(f's_mul_i32 s37, s35, {TM}'); a(f's_add_u32 s37, s37, s40')
    a(f's_mul_i32 s38, s36, {TN//NB}'); a(f's_add_u32 s38, s38, s42')
    a(f's_mov_b32 s39, {ldc}')
    T=FR
    if epi in('perm','glu'):
        rs,cs=('s37','s38') if orient=='N' else ('s38','s37')
        a(f'v_add_u32 v{vt0}, {rs}, v{vt0}'); a(f'v_mul_lo_u32 v{vt0}, v{vt0}, s39')
        a(f'v_lshlrev_b32 v{vt1}, 4, v{vt1}'); a(f's_lshl_b32 s39, {cs}, 1')
        a(f'v_add3_u32 v{vt0}, v{vt0}, v{vt1}, s39')
        k=0
        for mt in range(nmt):
            for nt in range(0,nnt,NB):
                c=ACC+16*(mt*nnt+nt)
                if epi=='glu':
                    for i in range(16):
                        a(f'v_max_f32 v{c+i}, 0, v{c+i}')
                    for i in range(16):
                        a(f'v_mul_f32 v{c+i}, v{c+i}, v{c+16+i}')
                no=nt//NB
                for g in range(2):
                    t=T+4*(k%(fsz//2)); k+=1
                    for i in range(4):
                        a(f'v_cvt_pk_bf16_f32 v{t+i}, v{c+8*g+2*i}, v{c+8*g+2*i+1}')
                    if orient=='N': ro,co=mt*32*ldc, (32*no+16*g)*2
                    else: ro,co=no*32*ldc,(32*mt+16*g)*2
                    a(f's_mov_b32 s39, 0x{ro:x}')
                    a(f'buffer_store_dwordx4 v[{t}:{t+3}], v{vt0}, s[16:19], s39 offen offset:{co}')
    elif epi=='part':
        assert orient=='N'
        a(f'v_add_u32 v{vt0}, s37, v{vt0}'); a(f'v_mul_lo_u32 v{vt0}, v{vt0}, s39')
        a(f'v_lshlrev_b32 v{vt2}, 4, v{vt1}'); a(f's_lshl_b32 s39, s38, 2')
        a(f'v_add3_u32 v{vt0}, v{vt0}, v{vt2}, s39')
        for mt in range(nmt):
            a(f's_mov_b32 s39, 0x{mt*32*ldc:x}')
            for nt in range(nnt):
                c=ACC+16*(mt*nnt+nt)
                for j in range(4):
                    a(f'buffer_store_dwordx4 v[{c+4*j}:{c+4*j+3}], v{vt0}, s[16:19], s39 offen offset:{(32*nt+8*j)*4}')
    elif epi=='resid':
        assert orient=='N'
        a(f'v_add_u32 v{vt0}, s37, v{vt0}'); a(f'v_mul_lo_u32 v{vt0}, v{vt0}, s39')
        a(f'v_lshlrev_b32 v{vt2}, 3, v{vt1}'); a(f's_lshl_b32 s39, s38, 1')
        a(f'v_add3_u32 v{vt0}, v{vt0}, v{vt2}, s39')
        a(f'v_lshlrev_b32 v{vt2}, 4, v{vt1}'); a(f's_lshl_b32 s39, s38, 2')
        a(f'v_add_u32 v{vt2}, s39, v{vt2}')
        RG=cur; cur+=16; RG=(RG+3)//4*4; cur=RG+16; RR=cur; cur+=8
        for mt in range(nmt):
            for nt in range(nnt):
                c=ACC+16*(mt*nnt+nt)
                a(f's_mov_b32 s39, 0x{mt*32*ldc:x}')
                for j in range(4):
                    a(f'buffer_load_dwordx4 v[{RG+4*j}:{RG+4*j+3}], v{vt2}, s[24:27], 0 offen offset:{(32*nt+8*j)*4}')
                for j in range(4):
                    a(f'buffer_load_dwordx2 v[{RR+2*j}:{RR+2*j+1}], v{vt0}, s[20:23], s39 offen offset:{(32*nt+8*j)*2}')
                a('s_waitcnt vmcnt(0)')
                for j in range(4):
                    for i in range(2):
                        a(f'v_lshlrev_b32 v{vt1}, 16, v{RR+2*j+i}')
                        a(f'v_and_b32 v{vt3}, 0xffff0000, v{RR+2*j+i}')
                        a(f'v_fma_f32 v{c+4*j+2*i}, v{c+4*j+2*i}, v{RG+4*j+2*i}, v{vt1}')
                        a(f'v_fma_f32 v{c+4*j+2*i+1}, v{c+4*j+2*i+1}, v{RG+4*j+2*i+1}, v{vt3}')
                        a(f'v_cvt_pk_bf16_f32 v{RR+2*j+i}, v{c+4*j+2*i}, v{c+4*j+2*i+1}')
                    a(f'buffer_store_dwordx2 v[{RR+2*j}:{RR+2*j+1}], v{vt0}, s[16:19], s39 offen offset:{(32*nt+8*j)*2}')
    ts()
    ts_dump()
    a('s_endpgm')
    return cur, NS*stage
```

```python
from common import *

def dpp_sum8(a,v,t):
    for m in ('quad_perm:[1,0,3,2]','quad_perm:[2,3,0,1]','row_half_mirror'):
        a('s_nop 1')
        a(f'v_add_f32_dpp v{v}, v{v}, v{v} {m} row_mask:0xf bank_mask:0xf')

def row_stats(a,X,n,vm,vr,t0,t1,red=None):
    red=red or dpp_sum8
    a(f'v_mov_b32 v{vm}, 0'); a(f'v_mov_b32 v{vr}, 0'); a(f'v_mov_b32 v{t0}, 0x3f803f80')
    for i in range(n):
        a(f'v_dot2_f32_bf16 v{vm}, v{X+i}, v{t0}, v{vm}')
        a(f'v_dot2_f32_bf16 v{vr}, v{X+i}, v{X+i}, v{vr}')
    red(a,vm,t1); red(a,vr,t1)
    a(f'v_mul_f32 v{vm}, 0x3b000000, v{vm}')
    a(f'v_mul_f32 v{vr}, 0x3b000000, v{vr}')
    a(f'v_fma_f32 v{vr}, -v{vm}, v{vm}, v{vr}')
    a(f'v_max_f32 v{vr}, 0, v{vr}')
    a(f'v_add_f32 v{vr}, 0x3727c5ac, v{vr}')
    a(f'v_rsq_f32 v{vr}, v{vr}')
    a('s_nop 0')

def mod_kernel(a,name):
    kernel_header(a,name)
    a('s_cmp_ge_u32 s2, 96'); a(f's_cbranch_scc1 {name}_end')
    a('s_load_dwordx2 s[6:7], s[0:1], %d'%KA['c']); a('s_load_dwordx2 s[8:9], s[0:1], %d'%KA['wmod']); a('s_load_dwordx2 s[10:11], s[0:1], %d'%KA['ws'])
    a('v_and_b32 v1, 3, v0'); a('v_lshrrev_b32 v2, 2, v0')
    a('s_mov_b32 s35, %d'%(4*6144)); a('v_mul_lo_u32 v3, v2, s35'); a('v_lshl_add_u32 v3, v1, 4, v3')
    a('v_lshlrev_b32 v4, 3, v2'); a('s_lshl_b32 s36, s2, 6')
    a('s_waitcnt lgkmcnt(0)')
    srd_from(a,16,6,0,1024); srd_from(a,20,8,0,512*6144); srd_from(a,24,10,WS_MOD,3072*4)
    a('buffer_load_dwordx2 v[8:9], v4, s[16:19], 0 offen')
    for i in range(4):
        a(f's_add_u32 s35, s36, {i*6144}')
        a(f'buffer_load_dwordx4 v[{16+4*i}:{19+4*i}], v3, s[20:23], s35 offen')
    a('s_waitcnt vmcnt(4)')
    for i in range(4):
        r=8+i//2
        a(f'v_lshlrev_b32 v{40+i}, 16, v{r}' if i%2==0 else f'v_and_b32 v{40+i}, 0xffff0000, v{r}')
    R=[(40+i,44+i) for i in range(4)]
    for x,t in R: a(f'v_mul_f32 v{t}, 0xbfb8aa3b, v{x}')
    for x,t in R: a(f'v_exp_f32 v{t}, v{t}')
    for x,t in R: a(f'v_add_f32 v{t}, 1.0, v{t}')
    for x,t in R: a(f'v_rcp_f32 v{t}, v{t}')
    for x,t in R: a(f'v_mul_f32 v{x}, v{x}, v{t}')
    for x,t in R:
        a(f'v_cvt_pk_bf16_f32 v{x}, v{x}, v{x}'); a(f'v_lshlrev_b32 v{x}, 16, v{x}')
    for j in range(8): a(f'v_mov_b32 v{48+j}, 0')
    a('v_lshlrev_b32 v6, 5, v0')
    a('s_waitcnt vmcnt(0)')
    for i in range(4):
        for j in range(8):
            r=16+4*i+j//2
            a(f'v_lshlrev_b32 v14, 16, v{r}' if j%2==0 else f'v_and_b32 v14, 0xffff0000, v{r}')
            a(f'v_fmac_f32 v{48+j}, v14, v{40+i}')
    a('ds_write_b128 v6, v[48:51]'); a('ds_write_b128 v6, v[52:55] offset:16')
    a('v_and_b32 v6, 31, v0'); a('v_lshrrev_b32 v7, 5, v0'); a('v_lshlrev_b32 v9, 2, v6'); a('v_lshl_add_u32 v8, v7, 10, v9')
    a('s_waitcnt lgkmcnt(0)'); a('s_barrier')
    for i in range(8): a(f'ds_read_b32 v{16+i}, v8 offset:{i*128}')
    a('s_waitcnt lgkmcnt(0)')
    for i in range(1,8): a(f'v_add_f32 v16, v16, v{16+i}')
    a('v_lshlrev_b32 v8, 2, v0'); a('ds_write_b32 v8, v16 offset:16384')
    a('s_waitcnt lgkmcnt(0)'); a('s_barrier')
    a('v_cmp_gt_u32 vcc, 32, v0'); a('s_and_saveexec_b64 s[38:39], vcc'); a(f's_cbranch_execz {name}_end')
    for i in range(16): a(f'ds_read_b32 v{16+i}, v9 offset:{16384+i*128}')
    a('s_waitcnt lgkmcnt(0)')
    for i in range(1,16): a(f'v_add_f32 v16, v16, v{16+i}')
    a('v_cvt_pk_bf16_f32 v16, v16, v16'); a('v_lshlrev_b32 v16, 16, v16')
    a('s_lshl_b32 s35, s2, 7')
    a('buffer_store_dword v16, v9, s[24:27], s35 offen')
    a.label(f'{name}_end')
    a('s_endpgm')
    return 56

def ln1_loads(a):
    a('s_load_dwordx2 s[52:53], s[0:1], %d'%KA['x']); a('s_load_dwordx2 s[58:59], s[0:1], %d'%KA['ws'])
    a('v_and_b32 v1, 63, v0'); a('v_lshlrev_b32 v2, 5, v1'); a('v_lshlrev_b32 v4, 4, v0'); a('s_lshl_b32 s80, s2, 13')
    a('s_movk_i32 s81, 2048')
    a('s_waitcnt lgkmcnt(0)')
    srd_from(a,60,52,0,2048*1024); srd_from(a,72,58,WS_MOD,4096); srd_from(a,76,58,WS_H1,2048*1024)
    a('buffer_load_dwordx4 v[12:15], v4, s[60:63], s80 offen')
    for q in range(2):
        a(f'buffer_load_dwordx4 v[{16+4*q}:{19+4*q}], v2, s[72:75], 0 offen offset:{16*q}')
        a(f'buffer_load_dwordx4 v[{24+4*q}:{27+4*q}], v2, s[72:75], s81 offen offset:{16*q}')

def ln1_hook(a,nd):
    a(f's_waitcnt vmcnt({4+nd})')
    row_stats(a,12,4,10,11,6,7,lambda a,v,t: wave_sum(a,v,t,82))
    a(f's_waitcnt vmcnt({nd})')
    for j in range(8):
        r=12+j//2; t=32+j
        a(f'v_lshlrev_b32 v{t}, 16, v{r}' if j%2==0 else f'v_and_b32 v{t}, 0xffff0000, v{r}')
        a(f'v_sub_f32 v{t}, v{t}, v10'); a(f'v_mul_f32 v{t}, v{t}, v11')
        a(f'v_add_f32 v{24+j}, 1.0, v{24+j}')
        a(f'v_fma_f32 v{t}, v{t}, v{24+j}, v{16+j}')
    for j in range(4): a(f'v_cvt_pk_bf16_f32 v{12+j}, v{32+2*j}, v{33+2*j}')
    a('buffer_store_dwordx4 v[12:15], v4, s[76:79], s80 offen')

def wave_sum(a,v,t,sb=40):
    for m in ('quad_perm:[1,0,3,2]','quad_perm:[2,3,0,1]','row_half_mirror','row_mirror'):
        a('s_nop 1')
        a(f'v_add_f32_dpp v{v}, v{v}, v{v} {m} row_mask:0xf bank_mask:0xf')
    a('s_nop 1')
    for i in range(4): a(f'v_readlane_b32 s{sb+i}, v{v}, {16*i}')
    a('s_nop 1')
    a(f'v_mov_b32 v{v}, s{sb}')
    for i in range(1,4): a(f'v_add_f32 v{v}, s{sb+i}, v{v}')

def ln2_kernel(a,name,KSP):
    kernel_header(a,name)
    a('s_cmp_ge_u32 s2, 256'); a(f's_cbranch_scc1 {name}_end')
    a('s_load_dwordx2 s[10:11], s[0:1], %d'%KA['ws']); a('s_load_dwordx2 s[8:9], s[0:1], %d'%KA['x'])
    a('v_and_b32 v1, 63, v0'); a('v_lshlrev_b32 v2, 5, v1')
    a('v_lshlrev_b32 v3, 5, v0'); a('v_lshlrev_b32 v4, 4, v0')
    a('s_lshl_b32 s35, s2, 14'); a('s_lshl_b32 s36, s2, 13')
    a('s_waitcnt lgkmcnt(0)')
    srd_from(a,12,10,WS_PART,KSP*(4<<20)); srd_from(a,24,10,WS_MOD+2*2048,3*2048); srd_from(a,28,10,WS_H2,2048*1024)
    srd_from(a,16,10,WS_X1,2048*1024); srd_from(a,20,8,0,2048*1024)
    for k in range(KSP):
        a(f's_add_u32 s37, s35, 0x{k*(4<<20):x}')
        for q in range(2):
            a(f'buffer_load_dwordx4 v[{16+8*k+4*q}:{19+8*k+4*q}], v3, s[12:15], s37 offen offset:{16*q}')
    B=16+8*KSP
    a(f'buffer_load_dwordx4 v[{B}:{B+3}], v4, s[20:23], s36 offen')
    G=B+4
    for m in range(3):
        for q in range(2):
            a(f's_mov_b32 s37, {2048*m}')
            a(f'buffer_load_dwordx4 v[{G+8*m+4*q}:{G+8*m+4*q+3}], v2, s[24:27], s37 offen offset:{16*q}')
    a('s_waitcnt vmcnt(4)')
    for k in range(1,KSP):
        for j in range(8): a(f'v_add_f32 v{16+j}, v{16+j}, v{16+8*k+j}')
    for j in range(8):
        r=B+j//2; t=24+j
        a(f'v_lshlrev_b32 v{t}, 16, v{r}' if j%2==0 else f'v_and_b32 v{t}, 0xffff0000, v{r}')
        a(f'v_fma_f32 v{t}, v{16+j}, v{G+j}, v{t}')
    for j in range(4): a(f'v_cvt_pk_bf16_f32 v{B+j}, v{24+2*j}, v{25+2*j}')
    a(f'buffer_store_dwordx4 v[{B}:{B+3}], v4, s[16:19], s36 offen')
    row_stats(a,B,4,10,11,6,7,wave_sum)
    a('s_waitcnt vmcnt(1)')
    for j in range(8):
        r=B+j//2; t=24+j
        a(f'v_lshlrev_b32 v{t}, 16, v{r}' if j%2==0 else f'v_and_b32 v{t}, 0xffff0000, v{r}')
        a(f'v_sub_f32 v{t}, v{t}, v10'); a(f'v_mul_f32 v{t}, v{t}, v11')
        a(f'v_add_f32 v{G+16+j}, 1.0, v{G+16+j}')
        a(f'v_fma_f32 v{t}, v{t}, v{G+16+j}, v{G+8+j}')
    for j in range(4): a(f'v_cvt_pk_bf16_f32 v{16+j}, v{24+2*j}, v{25+2*j}')
    a(f'buffer_store_dwordx4 v[16:19], v4, s[28:31], s36 offen')
    a.label(f'{name}_end')
    a('s_endpgm')
    return G+24
```

```python
import sys
from common import *
from gemm import gemm_body
from small import mod_kernel, ln1_loads, ln1_hook, ln2_kernel
import os
AOLD=os.environ.get('AOLD')=='1'
if AOLD:
    from attn_old import attn_kernel
else:
    from attn import attn_kernel
NAME='adaLN_cond__compressed_kv_cla__glu_gated_reglu__prompt'
hdr=open(f'cdna_kernels/{NAME}.s.ref').read().split('; Override launch')[0]
import os
DBG=int(os.environ['DBG']) if 'DBG' in os.environ else None
a=Asm(); descs=[]; launches=[]

def ld(a,reg,key): a(f's_load_dwordx2 s[{reg}:{reg+1}], s[0:1], {KA[key]}')

n='mod_kernel'; nv=mod_kernel(a,n); descs.append(kernel_desc(n,nv)); launches.append((n,96,512,18432))
n='kvprep_kernel'; kernel_header(a,n)
a('s_cmp_lt_u32 s2, 256'); a(f's_cbranch_scc1 {n}_gemm')
a('s_endpgm')
a.label(f'{n}_gemm')
ld(a,44,'ckv'); ld(a,46,'wuk'); ld(a,48,'wuv'); ld(a,50,'ws'); a('s_waitcnt lgkmcnt(0)')
a('s_and_b32 s41, s2, 7'); a('s_lshl_b32 s41, s41, 2'); a('s_lshr_b32 s35, s2, 3'); a('s_and_b32 s35, s35, 3'); a('s_add_u32 s41, s41, s35')
a('s_lshr_b32 s40, s2, 5'); a('s_lshl_b32 s40, s40, 8')
srd_from(a,4,44,0,2<<20)
a('s_cmp_ge_u32 s41, 16'); a(f's_cbranch_scc1 {n}_v')
a('s_lshl_b32 s41, s41, 8'); a('s_mov_b32 s42, s41')
srd_from(a,8,46,0,4<<20); srd_from(a,16,50,WS_K,16<<20)
PK=dict(BM=256,BN=256,WM=2,WN=4,KS=1,BK=64,NS=2,K=512,lda=1024,ldb=8192,ldc=8192,NB=1,kperm=0,orient='N',epi='perm',dbg=DBG)
nv1,lds1=gemm_body(a,dict(PK,hook0=lambda: ln1_loads(a),hook=lambda nd: ln1_hook(a,nd)),n+'_k')
a.label(f'{n}_v')
a('s_sub_u32 s41, s41, 16'); a('s_lshl_b32 s41, s41, 8'); a('s_mov_b32 s42, s41')
srd_from(a,8,48,0,4<<20); srd_from(a,16,50,WS_VT,16<<20)
nv2,_=gemm_body(a,dict(PK,orient='M',ldc=4096,hook0=lambda: ln1_loads(a),hook=lambda nd: ln1_hook(a,nd)),n+'_v')
descs.append(kernel_desc(n,max(nv1,nv2,128))); launches.append((n,256,512,lds1))

n='qproj_kernel'; kernel_header(a,n)
a('s_cmp_ge_u32 s2, 256'); a(f's_cbranch_scc1 {n}_end')
ld(a,46,'wq'); ld(a,50,'ws'); a('s_waitcnt lgkmcnt(0)')
a('s_and_b32 s40, s2, 1'); a('s_lshl_b32 s40, s40, 2'); a('s_bfe_u32 s35, s2, 0x20003'); a('s_add_u32 s40, s40, s35'); a('s_lshl_b32 s40, s40, 8')
a('s_bfe_u32 s41, s2, 0x20001'); a('s_lshl_b32 s41, s41, 3'); a('s_lshr_b32 s35, s2, 5'); a('s_add_u32 s41, s41, s35')
a('s_lshl_b32 s41, s41, 7'); a('s_mov_b32 s42, s41')
srd_from(a,4,50,WS_H1,2<<20); srd_from(a,8,46,0,4<<20); srd_from(a,16,50,WS_Q,16<<20)
nv,lds=gemm_body(a,dict(PK,BN=128,WM=4,WN=2,NS=3),n)
a.label(f'{n}_end'); a('s_endpgm')
descs.append(kernel_desc(n,nv)); launches.append((n,256,512,lds))

n='attn_kernel'; nv=attn_kernel(a,n); descs.append(kernel_desc(n,nv)); launches.append((n,256,512,131072 if AOLD else 163840))

def resid_gemm(n,Aoff,Asz,lda,wkey,K,res,out,modoff,NS,BK):
    kernel_header(a,n)
    a('s_cmp_ge_u32 s2, 256'); a(f's_cbranch_scc1 {n}_end')
    ld(a,46,wkey); ld(a,50,'ws'); ld(a,44,'x'); ld(a,48,'out'); a('s_waitcnt lgkmcnt(0)')
    a('s_and_b32 s40, s2, 7'); a('s_lshl_b32 s40, s40, 2'); a('s_lshr_b32 s35, s2, 3'); a('s_and_b32 s35, s35, 3'); a('s_add_u32 s40, s40, s35')
    a('s_lshl_b32 s40, s40, 6'); a('s_lshr_b32 s41, s2, 5'); a('s_lshl_b32 s41, s41, 6'); a('s_mov_b32 s42, s41')
    srd_from(a,4,50,Aoff,Asz); srd_from(a,8,46,0,K*1024)
    if out=='x1': srd_from(a,16,50,WS_X1,2<<20); srd_from(a,20,44,0,2<<20)
    else: srd_from(a,16,48,0,2<<20); srd_from(a,20,50,WS_X1,2<<20)
    srd_from(a,24,50,WS_MOD+modoff,2048)
    nv,lds=gemm_body(a,dict(BM=64,BN=64,WM=2,WN=2,KS=2,BK=BK,NS=NS,K=K,lda=lda,ldb=1024,ldc=1024,NB=1,kperm=1,orient='N',epi='resid',dbg=DBG),n)
    a.label(f'{n}_end'); a('s_endpgm')
    descs.append(kernel_desc(n,nv)); launches.append((n,256,512,lds))
n='oproj_kernel'; kernel_header(a,n)
a('s_cmp_ge_u32 s2, 256'); a(f's_cbranch_scc1 {n}_end')
ld(a,46,'wo'); ld(a,50,'ws'); a('s_waitcnt lgkmcnt(0)')
a('s_and_b32 s40, s2, 1'); a('s_lshl_b32 s40, s40, 3'); a('s_bfe_u32 s35, s2, 0x30003'); a('s_add_u32 s40, s40, s35'); a('s_lshl_b32 s40, s40, 7')
a('s_lshr_b32 s41, s2, 6'); a('s_lshl_b32 s41, s41, 7'); a('s_mov_b32 s42, s41')
a('s_bfe_u32 s35, s2, 0x20001'); a('s_lshl_b32 s43, s35, 10'); a('s_lshl_b32 s35, s35, 22')
srd_from(a,4,50,WS_CTX,16<<20); srd_from(a,8,46,0,4<<20); srd_from(a,16,50,WS_PART,4<<20)
a('s_add_u32 s16, s16, s35'); a('s_addc_u32 s17, s17, 0')
nv,lds=gemm_body(a,dict(BM=128,BN=128,WM=2,WN=4,KS=1,BK=64,NS=4,K=1024,lda=8192,ldb=1024,ldc=2048,NB=1,kperm=1,orient='N',epi='part',ksplit=1,dbg=DBG),n)
a.label(f'{n}_end'); a('s_endpgm')
descs.append(kernel_desc(n,nv)); launches.append((n,256,512,lds))
n='ln2_kernel'; nv=ln2_kernel(a,n,4); descs.append(kernel_desc(n,nv)); launches.append((n,256,512,0))
n='glu_kernel'; kernel_header(a,n)
a('s_cmp_ge_u32 s2, 224'); a(f's_cbranch_scc1 {n}_end')
ld(a,46,'wg'); ld(a,48,'wu'); ld(a,50,'ws'); a('s_waitcnt lgkmcnt(0)')
a('s_and_b32 s40, s2, 1'); a('s_lshl_b32 s40, s40, 2'); a('s_bfe_u32 s35, s2, 0x20003'); a('s_add_u32 s40, s40, s35'); a('s_lshl_b32 s40, s40, 8')
a('s_bfe_u32 s41, s2, 0x20001'); a('s_mul_i32 s41, s41, 7'); a('s_lshr_b32 s35, s2, 5'); a('s_add_u32 s41, s41, s35')
a('s_lshl_b32 s41, s41, 6'); a('s_mov_b32 s42, s41')
srd_from(a,4,50,WS_H2,2<<20); srd_from(a,8,46,0,512*3584); srd_from(a,12,48,0,512*3584); srd_from(a,16,50,WS_HH,2048*3584)
nv,lds=gemm_body(a,dict(BM=256,BN=128,WM=4,WN=2,KS=1,BK=64,NS=3,K=512,lda=1024,ldb=3584,ldc=3584,NB=2,kperm=0,orient='N',epi='glu',dbg=DBG),n)
a.label(f'{n}_end'); a('s_endpgm')
descs.append(kernel_desc(n,nv)); launches.append((n,224,512,lds))
resid_gemm('down_kernel',WS_HH,2048*3584,3584,'wd',1792,'x1','out',5*2048,4,128)

out=hdr+''.join(f'; @launch kernel={k} grid=({g},1,1) block=({b},1,1) lds={l}\n' for k,g,b,l in launches)
out+='.amdgcn_target "amdgcn-amd-amdhsa--gfx950"\n'+a.text()+''.join(descs)
open(sys.argv[1] if len(sys.argv)>1 else f'cdna_kernels/{NAME}.s','w').write(out)
print([ (k,g,b,l) for k,g,b,l in launches], len(out))
```
